```python
import torch

def _softmax(x, axis=-1):
    return torch.softmax(x, dim=axis)

def _gelu(x):
    return torch.nn.functional.gelu(x, approximate='tanh')

def _silu(x):
    return torch.nn.functional.silu(x)

def _sigmoid(x):
    return torch.sigmoid(x)

def _layernorm(x, axis=-1, eps=1e-05):
    m = x.mean(dim=axis, keepdim=True)
    v = x.var(dim=axis, keepdim=True, unbiased=False)
    return (x - m) / torch.sqrt(v + eps)

def _scatter_add(tgt, idx, src, axis=0):
    return tgt.clone().index_add_(axis, idx, src)

def _segment_sum(src, seg, n):
    out = torch.zeros((n,) + src.shape[1:], dtype=src.dtype)
    return out.index_add_(0, seg, src)

def _pad(x, pw):
    flat = tuple((v for pair in reversed(pw) for v in pair))
    return torch.nn.functional.pad(x, flat)
kernel_name = 'standalone__mixer_gmlp__prompt'

def setup_inputs():

    _w = lambda a: (lambda t: t.to(torch.bfloat16) if t.is_floating_point() else t)(torch.as_tensor(a))
    B, S, D, F = (1, 2048, 448, 1792)
    Fh = F // 2
    return {'x': _w((lambda *s: torch.randn(*s, dtype=torch.bfloat16) * 0.05)(B, S, D)), 'w_in': _w((lambda *s: torch.randn(*s, dtype=torch.bfloat16) * 0.4)(D, 2 * Fh)), 'w_sp': _w(0.01 * (lambda *s: torch.randn(*s, dtype=torch.bfloat16) * 0.4)(S, S)), 'b_sp': _w(1.0 + 0.01 * (lambda *s: torch.randn(*s, dtype=torch.bfloat16) * 0.05)(S)), 'w_out': _w((lambda *s: torch.randn(*s, dtype=torch.bfloat16) * 0.05)(Fh, D))}

def reference(x, w_in, w_sp, b_sp, w_out):
    B, S, D = x.shape
    F = w_in.shape[-1]
    Fh = F // 2
    z = _gelu(torch.einsum('bsd,df->bsf', x, w_in))
    z1 = z[..., :Fh].clone()
    z2 = _layernorm(z[..., Fh:], axis=-1)
    g = torch.einsum('ts,bsf->btf', w_sp, z2) + b_sp[None, :, None]
    return torch.einsum('bsf,fd->bsd', z1 * g, w_out)
```

```python
import sys, struct

S_, D_, F_, FH = 2048, 448, 1792, 896
WS_Z = 0
WS_ST = 0x800000
WS_H = 0x900000


def f2u(x):
    return struct.unpack('<I', struct.pack('<f', x))[0]


def log2(x):
    l = x.bit_length() - 1
    assert 1 << l == x, x
    return l


class G:
    def __init__(self):
        self.L = []
        self.vm = []
        self.nv = 0

    def __call__(self, s):
        self.L.append("  " + s)

    def lab(self, s):
        self.L.append(s + ":")

    def nop(self, n):
        while n > 0:
            k = min(n, 16)
            self("s_nop %d" % (k - 1))
            n -= k

    def vmem(self, s, tag):
        self(s)
        self.vm.append(tag)

    def wait_vm(self, tag, extra=""):
        idx = -1
        for i, t in enumerate(self.vm):
            if t == tag:
                idx = i
        if idx < 0:
            if extra:
                self("s_waitcnt " + extra)
            return
        n = len(self.vm) - 1 - idx
        assert n <= 63
        self("s_waitcnt vmcnt(%d) %s" % (n, extra))
        self.vm = self.vm[idx + 1:]

    def valloc(self, n, align=1):
        self.nv = (self.nv + align - 1) // align * align
        r = self.nv
        self.nv += n
        self.nvmax = max(getattr(self, 'nvmax', 0), self.nv)
        return r


def vr(b, n=1):
    return "v%d" % b if n == 1 else "v[%d:%d]" % (b, b + n - 1)


class Cfg:
    pass


S_PTR = 32
SRD_A, SRD_B, SRD_C, SRD_D, SRD_E = 8, 12, 16, 20, 24
S_TM, S_TN, S_W, S_SOA, S_SOB = 48, 49, 50, 51, 52
S_M0A, S_M0B, S_CNT, S_T0, S_T1, S_T2, S_T3 = 53, 54, 55, 56, 57, 58, 59
PTR = dict(x=32, w_in=34, w_sp=36, b_sp=38, w_out=40, out=42, dbg=44, ws=46)


def mk_srd(g, srd, ptr, off, nbytes):
    p = PTR[ptr]
    if off:
        g("s_add_u32 s%d, s%d, 0x%x" % (srd, p, off))
        g("s_addc_u32 s%d, s%d, 0" % (srd + 1, p + 1))
    else:
        g("s_mov_b32 s%d, s%d" % (srd, p))
        g("s_mov_b32 s%d, s%d" % (srd + 1, p + 1))
    g("s_and_b32 s%d, s%d, 0xffff" % (srd + 1, srd + 1))
    g("s_mov_b32 s%d, 0x%x" % (srd + 2, nbytes))
    g("s_mov_b32 s%d, 0x20000" % (srd + 3))


def gen_kernel(c):
    g = G()
    name = c.name
    NW = 4
    RA = c.BK * 2
    RB = c.BN * 2
    PPA, PPB = RA // 16, RB // 16
    ASZ, BSZ = c.BM * RA, c.BK * RB
    nA = ASZ // 1024 // NW
    nB = BSZ // 1024 // NW
    mi, nj, nks = c.WM // 32, c.WN // 32, c.BK // 16
    wpn = c.BN // c.WN
    nst = c.K // c.BK
    RAs = c.DA + 1
    if c.ln:
        RBs = 2
        LDS_A0 = 0
        LDS_B0 = RAs * ASZ
        LDS_T0 = LDS_B0 + RBs * BSZ
        lds_total = LDS_T0 + 2048 * 8
        U = RAs
        while U % c.DB or U % 2:
            U += RAs
    else:
        RBs = RAs
        LDS_A0 = 0
        LDS_B0 = RAs * ASZ
        lds_total = LDS_B0 + RBs * BSZ
        U = RAs
    lds_total = max(lds_total, getattr(c, 'lds_min', 0))
    assert lds_total <= 160 * 1024, lds_total
    c.lds = lds_total

    g.lab(name)
    g("s_cmp_ge_u32 s2, %d" % (c.TM * c.TN))
    g("s_cbranch_scc1 %s_end" % name)
    g("s_load_dwordx16 s[32:47], s[0:1], 0")
    g("s_and_b32 s%d, s2, 7" % S_T0)
    g("s_lshr_b32 s%d, s2, 3" % S_T1)
    g("s_and_b32 s%d, s%d, 3" % (S_TM, S_T1))
    g("s_lshr_b32 s%d, s%d, 2" % (S_TN, S_T1))
    if c.TN == 14:
        g("s_lshr_b32 s%d, s%d, 1" % (S_T2, S_T0))
        g("s_lshl_b32 s%d, s%d, 2" % (S_T2, S_T2))
        g("s_add_u32 s%d, s%d, s%d" % (S_TM, S_TM, S_T2))
        g("s_and_b32 s%d, s%d, 1" % (S_T2, S_T0))
        g("s_mul_i32 s%d, s%d, 7" % (S_T2, S_T2))
        g("s_add_u32 s%d, s%d, s%d" % (S_TN, S_TN, S_T2))
    else:
        assert c.TN == 7
        g("s_lshl_b32 s%d, s%d, 2" % (S_T2, S_T0))
        g("s_add_u32 s%d, s%d, s%d" % (S_TM, S_TM, S_T2))
    v_lane = g.valloc(2)[0] if False else None
    g.nv = 1
    vL = g.valloc(1)
    vW = g.valloc(1)
    t0 = g.valloc(1); t1 = g.valloc(1); t2 = g.valloc(1); t3 = g.valloc(1)
    g("v_and_b32 v%d, 63, v0" % vL)
    g("v_lshrrev_b32 v%d, 6, v0" % vW)
    g("s_nop 0")
    g("v_readfirstlane_b32 s%d, v%d" % (S_W, vW))
    vAs = [g.valloc(1) for _ in range(nA)]
    vBs = [g.valloc(1) for _ in range(nB)]
    rpcA, rpcB = 1024 // RA, 1024 // RB
    g("s_mul_i32 s%d, s%d, %d" % (S_T0, S_TM, c.BM * c.lda))
    for q in range(nA):
        g("v_lshrrev_b32 v%d, %d, v%d" % (t0, log2(PPA), vL))
        g("v_mul_u32_u24 v%d, %d, v%d" % (t1, nA * rpcA, vW))
        g("v_add3_u32 v%d, v%d, v%d, %d" % (t0, t0, t1, q * rpcA))
        if PPA == 8:
            g("v_lshrrev_b32 v%d, 1, v%d" % (t1, t0))
            g("v_and_b32 v%d, 7, v%d" % (t1, t1))
        else:
            assert PPA == 16
            g("v_and_b32 v%d, 15, v%d" % (t1, t0))
        g("v_and_b32 v%d, %d, v%d" % (t2, PPA - 1, vL))
        g("v_xor_b32 v%d, v%d, v%d" % (t2, t2, t1))
        g("v_lshlrev_b32 v%d, 4, v%d" % (t2, t2))
        g("s_mov_b32 s%d, %d" % (S_T1, c.lda))
        g("v_mul_lo_u32 v%d, v%d, s%d" % (t0, t0, S_T1))
        g("v_add3_u32 v%d, v%d, v%d, s%d" % (vAs[q], t0, t2, S_T0))
    g("s_mul_i32 s%d, s%d, %d" % (S_T0, S_TN, c.BN * 2))
    if getattr(c, 'b_col0', 0):
        g("s_add_u32 s%d, s%d, %d" % (S_T0, S_T0, c.b_col0 * 2))
    vBrow = []
    for q in range(nB):
        g("v_lshrrev_b32 v%d, %d, v%d" % (t0, log2(PPB), vL))
        g("v_mul_u32_u24 v%d, %d, v%d" % (t1, nB * rpcB, vW))
        g("v_add3_u32 v%d, v%d, v%d, %d" % (t0, t0, t1, q * rpcB))
        if c.ln:
            r = g.valloc(1)
            vBrow.append(r)
            g("v_lshlrev_b32 v%d, 3, v%d" % (r, t0))
            g("v_add_u32 v%d, %d, v%d" % (r, LDS_T0, r))
        if PPB == 8:
            g("v_lshrrev_b32 v%d, 1, v%d" % (t1, t0))
            g("v_and_b32 v%d, 1, v%d" % (t1, t1))
        else:
            assert PPB == 16
            g("v_and_b32 v%d, 3, v%d" % (t1, t0))
        g("v_lshlrev_b32 v%d, 2, v%d" % (t1, t1))
        g("v_and_b32 v%d, %d, v%d" % (t2, PPB - 1, vL))
        g("v_xor_b32 v%d, v%d, v%d" % (t2, t2, t1))
        g("v_lshlrev_b32 v%d, 4, v%d" % (t2, t2))
        g("s_mov_b32 s%d, %d" % (S_T1, c.ldb))
        g("v_mul_lo_u32 v%d, v%d, s%d" % (t0, t0, S_T1))
        g("v_add3_u32 v%d, v%d, v%d, s%d" % (vBs[q], t0, t2, S_T0))
    vWm = g.valloc(1); vWn = g.valloc(1)
    g("v_lshrrev_b32 v%d, %d, v%d" % (vWm, log2(wpn), vW))
    g("v_and_b32 v%d, %d, v%d" % (vWn, wpn - 1, vW))
    vAf = g.valloc(1)
    g("v_and_b32 v%d, 31, v%d" % (t0, vL))
    g("v_mul_u32_u24 v%d, %d, v%d" % (t1, c.WM, vWm))
    g("v_add_u32 v%d, v%d, v%d" % (t0, t0, t1))
    if PPA == 8:
        g("v_lshrrev_b32 v%d, 1, v%d" % (t1, t0))
        g("v_and_b32 v%d, 7, v%d" % (t1, t1))
    else:
        g("v_and_b32 v%d, 15, v%d" % (t1, t0))
    g("v_lshrrev_b32 v%d, 5, v%d" % (t2, vL))
    g("v_xor_b32 v%d, v%d, v%d" % (t2, t2, t1))
    g("v_lshlrev_b32 v%d, 4, v%d" % (t2, t2))
    g("v_lshlrev_b32 v%d, %d, v%d" % (t0, log2(RA), t0))
    g("v_add_u32 v%d, v%d, v%d" % (vAf, t0, t2))
    vBf = g.valloc(1)
    g("v_lshrrev_b32 v%d, 5, v%d" % (t0, vL))
    g("v_lshlrev_b32 v%d, 3, v%d" % (t0, t0))
    g("v_bfe_u32 v%d, v%d, 2, 2" % (t1, vL))
    g("v_add_u32 v%d, v%d, v%d" % (t0, t0, t1))
    if PPB == 8:
        g("v_lshrrev_b32 v%d, 1, v%d" % (t1, t1))
    g("v_lshlrev_b32 v%d, 2, v%d" % (t1, t1))
    g("v_mul_u32_u24 v%d, %d, v%d" % (t2, c.WN // 8, vWn))
    g("v_bfe_u32 v%d, v%d, 4, 1" % (t3, vL))
    g("v_lshl_add_u32 v%d, v%d, 1, v%d" % (t2, t3, t2))
    g("v_bfe_u32 v%d, v%d, 1, 1" % (t3, vL))
    g("v_add_u32 v%d, v%d, v%d" % (t2, t2, t3))
    g("v_xor_b32 v%d, v%d, v%d" % (t2, t2, t1))
    g("v_lshlrev_b32 v%d, 4, v%d" % (t2, t2))
    g("v_lshlrev_b32 v%d, %d, v%d" % (t0, log2(RB), t0))
    g("v_add_u32 v%d, v%d, v%d" % (t0, t0, t2))
    g("v_and_b32 v%d, 1, v%d" % (t3, vL))
    g("v_lshl_add_u32 v%d, v%d, 3, v%d" % (vBf, t3, t0))
    g("v_add_u32 v%d, %d, v%d" % (vBf, LDS_B0, vBf))
    vAfs = [[g.valloc(1) for _ in range(nks)] for _ in range(RAs)]
    vBfs = [[g.valloc(1) for _ in range(nj)] for _ in range(RBs)]
    for sl in range(RAs):
        for ks in range(nks):
            g("v_xor_b32 v%d, %d, v%d" % (vAfs[sl][ks], ks * 32, vAf))
            if sl:
                g("v_add_u32 v%d, %d, v%d" % (vAfs[sl][ks], sl * ASZ, vAfs[sl][ks]))
    for sl in range(RBs):
        for j in range(nj):
            g("v_xor_b32 v%d, %d, v%d" % (vBfs[sl][j], j * 64, vBf))
            if sl:
                g("v_add_u32 v%d, %d, v%d" % (vBfs[sl][j], sl * BSZ, vBfs[sl][j]))
    if c.ln:
        vBw = g.valloc(1)
        g("v_mul_u32_u24 v%d, %d, v%d" % (t0, nB * 1024, vW))
        g("v_lshl_add_u32 v%d, v%d, 4, v%d" % (vBw, vL, t0))
        g("v_add_u32 v%d, %d, v%d" % (vBw, LDS_B0, vBw))
    g("s_mul_i32 s%d, s%d, %d" % (S_M0A, S_W, nA * 1024))
    g("s_mul_i32 s%d, s%d, %d" % (S_M0B, S_W, nB * 1024))
    g("s_add_u32 s%d, s%d, %d" % (S_M0B, S_M0B, LDS_B0))
    g("s_mov_b32 s%d, 0" % S_SOA)
    g("s_mov_b32 s%d, 0" % S_SOB)
    g("s_waitcnt lgkmcnt(0)")
    mk_srd(g, SRD_A, *c.a_buf)
    mk_srd(g, SRD_B, *c.b_buf)
    mk_srd(g, SRD_C, *c.c_buf)
    if hasattr(c, 'd_buf'):
        mk_srd(g, SRD_D, *c.d_buf)
    if hasattr(c, 'e_buf'):
        mk_srd(g, SRD_E, *c.e_buf)

    blk = g.valloc(16 * mi * nj + 8 * mi + 8 * nj, 4)
    acc = [[blk + 16 * (i * nj + j) for j in range(nj)] for i in range(mi)]
    fb0 = blk + 16 * mi * nj
    fA = [[fb0 + 4 * (b * mi + i) for i in range(mi)] for b in range(2)]
    fB = [[fb0 + 8 * mi + 4 * (b * nj + j) for j in range(nj)] for b in range(2)]

    def zero_acc():
        for i in range(mi):
            for j in range(nj):
                for r in range(16):
                    g("v_mov_b32 v%d, 0" % (acc[i][j] + r))
    if not c.ln:
        zero_acc()

    def issue_A(st):
        sl = st % RAs
        for q in range(nA):
            g("s_add_u32 m0, s%d, %d" % (S_M0A, LDS_A0 + sl * ASZ + q * 1024))
            g("s_nop 0")
            g.vmem("buffer_load_dwordx4 v%d, s[%d:%d], s%d offen lds" % (vAs[q], SRD_A, SRD_A + 3, S_SOA), ("A", st))
        g("s_add_u32 s%d, s%d, %d" % (S_SOA, S_SOA, c.BK * 2))

    def issue_B_dma(st):
        sl = st % RBs
        for q in range(nB):
            g("s_add_u32 m0, s%d, %d" % (S_M0B, sl * BSZ + q * 1024))
            g("s_nop 0")
            g.vmem("buffer_load_dwordx4 v%d, s[%d:%d], s%d offen lds" % (vBs[q], SRD_B, SRD_B + 3, S_SOB), ("B", st))
        g("s_add_u32 s%d, s%d, %d" % (S_SOB, S_SOB, c.BK * c.ldb))

    if c.ln:
        vBr = [[g.valloc(4, 2) for _ in range(nB)] for _ in range(c.DB)]
        vTab = [g.valloc(2, 2) for _ in range(nB)]
        vX = g.valloc(8, 2)
        vO = g.valloc(4, 2)

    def issue_B_reg(st):
        rs = st % c.DB
        for q in range(nB):
            g.vmem("buffer_load_dwordx4 %s, v%d, s[%d:%d], s%d offen" % (vr(vBr[rs][q], 4), vBs[q], SRD_B, SRD_B + 3, S_SOB), ("B", st))
        g("s_add_u32 s%d, s%d, %d" % (S_SOB, S_SOB, c.BK * c.ldb))

    def xform_B(st):
        rs = st % c.DB
        sl = st % RBs
        for q in range(nB):
            g("ds_read_b64 %s, v%d" % (vr(vTab[q], 2), vBrow[q]))
        g.wait_vm(("B", st), "lgkmcnt(0)")
        for q in range(nB):
            g("v_add_u32 v%d, %d, v%d" % (vBrow[q], c.BK * 8, vBrow[q]))
        for q in range(nB):
            src = vBr[rs][q]
            for d in range(4):
                g("v_lshlrev_b32 v%d, 16, v%d" % (vX + 2 * d, src + d))
                g("v_and_b32 v%d, 0xffff0000, v%d" % (vX + 2 * d + 1, src + d))
            for d in range(4):
                g("v_pk_fma_f32 %s, %s, %s, %s op_sel:[0,0,1] op_sel_hi:[1,0,1]" % (
                    vr(vX + 2 * d, 2), vr(vX + 2 * d, 2), vr(vTab[q], 2), vr(vTab[q], 2)))
            for d in range(4):
                g("v_cvt_pk_bf16_f32 v%d, v%d, v%d" % (vO + d, vX + 2 * d, vX + 2 * d + 1))
            g("ds_write_b128 v%d, %s offset:%d" % (vBw, vr(vO, 4), sl * BSZ + q * 1024))

    def frag_reads(st, ks, buf):
        sa, sb = st % RAs, st % RBs
        n = 0
        for i in range(mi):
            g("ds_read_b128 %s, v%d offset:%d" % (vr(fA[buf][i], 4), vAfs[sa][ks], i * 32 * RA))
            n += 1
        for j in range(nj):
            for h in range(2):
                g("ds_read_b64_tr_b16 %s, v%d offset:%d" % (vr(fB[buf][j] + 2 * h, 2), vBfs[sb][j], (ks * 16 + 4 * h) * RB))
                n += 1
        return n

    def compute(st):
        frag_reads(st, 0, 0)
        for ks in range(nks):
            n = 0
            if ks + 1 < nks:
                n = frag_reads(st, ks + 1, (ks + 1) & 1)
            g("s_waitcnt lgkmcnt(%d)" % n)
            b = ks & 1
            for i in range(mi):
                for j in range(nj):
                    g("v_mfma_f32_32x32x16_bf16 %s, %s, %s, %s" % (
                        vr(acc[i][j], 16), vr(fB[b][j], 4), vr(fA[b][i], 4), vr(acc[i][j], 16)))

    ectx = {}
    if hasattr(c, 'pre'):
        c.pre(g, c, ectx, locals())

    if c.ln:
        nv_save = g.nv
        stats_prologue(g, c, locals())
        for st in range(c.DA):
            issue_A(st)
        for st in range(c.DB):
            issue_B_reg(st)
        stats_finish(g, c, locals())
        g.nv = nv_save
        zero_acc()
        xform_B(0)
        issue_B_reg(c.DB)
    else:
        for st in range(c.DA):
            issue_A(st)
            issue_B_dma(st)

    groups = []
    pre_len = len(g.L)
    body = g.L
    g.L = []
    stage_txt = []
    for st in range(nst):
        g.L = []
        if c.ln:
            g.wait_vm(("A", st), "lgkmcnt(0)")
        else:
            g.wait_vm(("B", st))
        g("s_barrier")
        if st + c.DA < nst:
            issue_A(st + c.DA)
            if not c.ln:
                issue_B_dma(st + c.DA)
        if c.ln and st + 1 < nst:
            xform_B(st + 1)
            if st + 1 + c.DB < nst:
                issue_B_reg(st + 1 + c.DB)
        compute(st)
        stage_txt.append(g.L)
    g.L = body
    grp = []
    for s0 in range(0, nst, U):
        grp.append(sum(stage_txt[s0:s0 + U], []))
    i = 0
    nloop = 0
    while i < len(grp):
        j = i
        while j + 1 < len(grp) and grp[j + 1] == grp[i]:
            j += 1
        cnt = j - i + 1
        if cnt >= 2:
            lab = "%s_loop%d" % (name, nloop)
            nloop += 1
            g("s_mov_b32 s%d, %d" % (S_CNT, cnt))
            g.lab(lab)
            g.L += grp[i]
            g("s_sub_u32 s%d, s%d, 1" % (S_CNT, S_CNT))
            g("s_cmp_lg_u32 s%d, 0" % S_CNT)
            g("s_cbranch_scc1 %s" % lab)
        else:
            g.L += grp[i]
        i = j + 1
    g.nop(16)
    c.epi(g, c, ectx, locals())
    g("s_waitcnt vmcnt(0)")
    g.lab("%s_end" % name)
    g("s_endpgm")
    c.nvgpr = g.nvmax
    return g


def stats_prologue(g, c, L):
    v1 = g.valloc(4 * 7 * 2, 2)
    vS = [v1 + r * 14 for r in range(4)] + [L['blk'] + r * 14 for r in range(4)]
    L['ectx']['vS'] = vS
    t = g.valloc(1)
    L['ectx']['vSoff'] = t
    g("v_lshlrev_b32 v%d, 3, v0" % t)
    for r in range(8):
        for j in range(7):
            off = (j * 2048 + r * 256) * 8
            g("s_mov_b32 s%d, %d" % (S_T0, off))
            g.vmem("buffer_load_dwordx2 %s, v%d, s[%d:%d], s%d offen" % (vr(vS[r] + j * 2, 2), t, SRD_E, SRD_E + 3, S_T0), ("S", 0))


def stats_finish(g, c, L):
    vS = L['ectx']['vS']
    t = L['ectx']['vSoff']
    LDS_T0 = L['LDS_T0']
    a = g.valloc(1); b = g.valloc(1); d = g.valloc(1); o = g.valloc(2, 2)
    g.wait_vm(("S", 0))
    g("v_add_u32 v%d, %d, v%d" % (t, LDS_T0, t))
    for r in range(8):
        base = vS[r]
        g("v_add_f32 v%d, v%d, v%d" % (a, base, base + 2))
        for j in range(2, 7):
            g("v_add_f32 v%d, v%d, v%d" % (a, a, base + 2 * j))
        g("v_mul_f32 v%d, 0x%x, v%d" % (a, f2u(1.0 / 7.0), a))
        g("v_add_f32 v%d, v%d, v%d" % (b, base + 1, base + 3))
        for j in range(2, 7):
            g("v_add_f32 v%d, v%d, v%d" % (b, b, base + 2 * j + 1))
        g("v_mov_b32 v%d, 0" % (o))
        for j in range(7):
            g("v_sub_f32 v%d, v%d, v%d" % (d, base + 2 * j, a))
            g("v_fmac_f32 v%d, v%d, v%d" % (o, d, d))
        g("v_mov_b32 v%d, 0x%x" % (d, f2u(128.0)))
        g("v_fmac_f32 v%d, v%d, v%d" % (b, o, d))
        g("v_mul_f32 v%d, 0x%x, v%d" % (b, f2u(1.0 / 896.0), b))
        g("v_cvt_pk_bf16_f32 v%d, v%d, v%d" % (d, a, b))
        g("v_lshlrev_b32 v%d, 16, v%d" % (a, d))
        g("v_and_b32 v%d, 0xffff0000, v%d" % (b, d))
        g("v_add_f32 v%d, 0x%x, v%d" % (b, f2u(1e-5), b))
        g("v_cvt_pk_bf16_f32 v%d, v%d, v%d" % (b, b, b))
        g("v_lshlrev_b32 v%d, 16, v%d" % (b, b))
        g("v_sqrt_f32 v%d, v%d" % (b, b))
        g("s_nop 0")
        g("v_cvt_pk_bf16_f32 v%d, v%d, v%d" % (b, b, b))
        g("v_lshlrev_b32 v%d, 16, v%d" % (b, b))
        g("v_rcp_f32 v%d, v%d" % (o, b))
        g("s_nop 0")
        g("v_mul_f32 v%d, v%d, v%d" % (o + 1, a, o))
        g("v_sub_f32 v%d, 0, v%d" % (o + 1, o + 1))
        g("ds_write_b64 v%d, %s offset:%d" % (t, vr(o, 2), r * 256 * 8))
        g("s_nop 1")
    g("s_waitcnt lgkmcnt(0)")
    g("s_barrier")


def out_addr(g, c, L, ld, col0_bytes=0):
    vL, vWm, vWn = L['vL'], L['vWm'], L['vWn']
    a = g.valloc(1); t = g.valloc(1)
    g("v_and_b32 v%d, 31, v%d" % (a, vL))
    g("v_mul_u32_u24 v%d, %d, v%d" % (t, c.WM, vWm))
    g("v_add_u32 v%d, v%d, v%d" % (a, a, t))
    g("s_mul_i32 s%d, s%d, %d" % (S_T0, S_TM, c.BM))
    g("v_add_u32 v%d, s%d, v%d" % (a, S_T0, a))
    g("s_mov_b32 s%d, %d" % (S_T1, ld))
    g("v_mul_lo_u32 v%d, v%d, s%d" % (a, a, S_T1))
    g("v_mul_u32_u24 v%d, %d, v%d" % (t, c.WN * 2, vWn))
    g("v_add_u32 v%d, v%d, v%d" % (a, a, t))
    g("s_mul_i32 s%d, s%d, %d" % (S_T0, S_TN, c.BN * 2))
    if col0_bytes:
        g("s_add_u32 s%d, s%d, %d" % (S_T0, S_T0, col0_bytes))
    g("v_add_u32 v%d, s%d, v%d" % (a, S_T0, a))
    return a, t


def store_tile(g, P, vaddr16, srd, off):
    g("s_nop 1")
    for p in range(2):
        g("v_permlane32_swap_b32 v%d, v%d" % (P + 4 * p, P + 4 * p + 2))
        g("v_permlane32_swap_b32 v%d, v%d" % (P + 4 * p + 1, P + 4 * p + 3))
    g("s_nop 1")
    for p in range(2):
        g.vmem("buffer_store_dwordx4 %s, v%d, s[%d:%d], 0 offen offset:%d" % (vr(P + 4 * p, 4), vaddr16, srd, srd + 3, off + 32 * p), ("ST", 0))


def epi_k1(g, c, ectx, L):
    acc, mi, nj, vL = L['acc'], L['mi'], L['nj'], L['vL']
    a, t = out_addr(g, c, L, F_ * 2)
    a16 = g.valloc(1)
    g("v_lshrrev_b32 v%d, 5, v%d" % (t, vL))
    g("v_lshl_add_u32 v%d, v%d, 4, v%d" % (a16, t, a))
    K1c = g.valloc(2, 2); K2c = g.valloc(2, 2)
    k1 = -2.0 * 0.7978845608028654 * 1.4426950408889634
    k2 = k1 * 0.044715
    for h in range(2):
        g("v_mov_b32 v%d, 0x%x" % (K1c + h, f2u(k1)))
        g("v_mov_b32 v%d, 0x%x" % (K2c + h, f2u(k2)))
    X = g.valloc(2, 2); T = g.valloc(2, 2); E = g.valloc(2, 2); pk = g.valloc(1)
    Ps = [g.valloc(8, 4) for _ in range(2)]
    n = 0
    arow = [a16] + [g.valloc(1) for _ in range(mi - 1)]
    for i in range(1, mi):
        g("v_add_u32 v%d, %d, v%d" % (arow[i], i * 32 * F_ * 2, a16))
    for i in range(mi):
        for j in range(nj):
            P = Ps[n & 1]; n += 1
            A = acc[i][j]
            for r in range(0, 16, 2):
                g("v_cvt_pk_bf16_f32 v%d, v%d, v%d" % (pk, A + r, A + r + 1))
                g("v_lshlrev_b32 v%d, 16, v%d" % (X, pk))
                g("v_and_b32 v%d, 0xffff0000, v%d" % (X + 1, pk))
                g("v_pk_mul_f32 %s, %s, %s" % (vr(T, 2), vr(X, 2), vr(X, 2)))
                g("v_pk_fma_f32 %s, %s, %s, %s" % (vr(T, 2), vr(T, 2), vr(K2c, 2), vr(K1c, 2)))
                g("v_pk_mul_f32 %s, %s, %s" % (vr(T, 2), vr(T, 2), vr(X, 2)))
                g("v_exp_f32 v%d, v%d" % (E, T))
                g("v_exp_f32 v%d, v%d" % (E + 1, T + 1))
                g("s_nop 0")
                g("v_add_f32 v%d, 1.0, v%d" % (E, E))
                g("v_add_f32 v%d, 1.0, v%d" % (E + 1, E + 1))
                g("v_rcp_f32 v%d, v%d" % (E, E))
                g("v_rcp_f32 v%d, v%d" % (E + 1, E + 1))
                g("s_nop 0")
                g("v_pk_mul_f32 %s, %s, %s" % (vr(T, 2), vr(E, 2), vr(X, 2)))
                g("v_cvt_pk_bf16_f32 v%d, v%d, v%d" % (P + r // 2, T, T + 1))
                g("v_lshlrev_b32 v%d, 16, v%d" % (A + r, P + r // 2))
                g("v_and_b32 v%d, 0xffff0000, v%d" % (A + r + 1, P + r // 2))
            store_tile(g, P, arow[i], SRD_C, j * 64)
    g("s_cmp_lt_u32 s%d, 7" % S_TN)
    g("s_cbranch_scc1 %s_nostats" % c.name)
    mean = [g.valloc(1) for _ in range(mi)]
    m2 = [g.valloc(1) for _ in range(mi)]
    u = g.valloc(1); w = g.valloc(1); dd = g.valloc(1)
    for i in range(mi):
        regs = [acc[i][j] + r for j in range(nj) for r in range(16)]
        g("v_add_f32 v%d, v%d, v%d" % (mean[i], regs[0], regs[1]))
        for r in regs[2:]:
            g("v_add_f32 v%d, v%d, v%d" % (mean[i], mean[i], r))
        g("v_mul_f32 v%d, 0x%x, v%d" % (mean[i], f2u(1.0 / len(regs)), mean[i]))
        g("v_mov_b32 v%d, 0" % m2[i])
        for r in regs:
            g("v_sub_f32 v%d, v%d, v%d" % (dd, r, mean[i]))
            g("v_fmac_f32 v%d, v%d, v%d" % (m2[i], dd, dd))
        nper = len(regs)
        g("v_mov_b32 v%d, v%d" % (u, mean[i]))
        g("v_mov_b32 v%d, v%d" % (w, m2[i]))
        g("s_nop 1")
        g("v_permlane32_swap_b32 v%d, v%d" % (u, mean[i]))
        g("v_permlane32_swap_b32 v%d, v%d" % (w, m2[i]))
        g("s_nop 1")
        g("v_sub_f32 v%d, v%d, v%d" % (dd, u, mean[i]))
        g("v_add_f32 v%d, v%d, v%d" % (mean[i], u, mean[i]))
        g("v_mul_f32 v%d, 0.5, v%d" % (mean[i], mean[i]))
        g("v_add_f32 v%d, v%d, v%d" % (m2[i], w, m2[i]))
        g("v_mul_f32 v%d, v%d, v%d" % (dd, dd, dd))
        g("v_mov_b32 v%d, 0x%x" % (u, f2u(nper / 2.0)))
        g("v_fmac_f32 v%d, v%d, v%d" % (m2[i], dd, u))
    nw = nper * 2
    vWm, vWn = L['vWm'], L['vWn']
    la = g.valloc(1); pr = g.valloc(2, 2)
    g("s_barrier")
    g("v_and_b32 v%d, 31, v%d" % (la, vL))
    g("v_lshl_add_u32 v%d, v%d, 6, v%d" % (la, vWm, la))
    g("v_lshlrev_b32 v%d, 3, v%d" % (la, la))
    g("v_cmp_eq_u32 vcc, 1, v%d" % vWn)
    g("s_and_saveexec_b64 s[60:61], vcc")
    g("s_cbranch_execz %s_st1" % c.name)
    for i in range(mi):
        g("v_mov_b32 v%d, v%d" % (pr, mean[i]))
        g("v_mov_b32 v%d, v%d" % (pr + 1, m2[i]))
        g("ds_write_b64 v%d, %s offset:%d" % (la, vr(pr, 2), i * 32 * 8))
        g("s_nop 1")
    g.lab("%s_st1" % c.name)
    g("s_mov_b64 exec, s[60:61]")
    g("s_waitcnt lgkmcnt(0)")
    g("s_barrier")
    g("v_cmp_eq_u32 vcc, 0, v%d" % vWn)
    g("v_cmp_gt_u32 s[62:63], 32, v%d" % vL)
    g("s_and_b64 vcc, vcc, s[62:63]")
    g("s_and_saveexec_b64 s[60:61], vcc")
    g("s_cbranch_execz %s_st2" % c.name)
    ga = g.valloc(1)
    g("s_sub_u32 s%d, s%d, 7" % (S_T0, S_TN))
    g("s_lshl_b32 s%d, s%d, 11" % (S_T0, S_T0))
    g("s_lshl_b32 s%d, s%d, 7" % (S_T1, S_TM))
    g("s_add_u32 s%d, s%d, s%d" % (S_T0, S_T0, S_T1))
    g("s_lshl_b32 s%d, s%d, 3" % (S_T0, S_T0))
    g("v_add_u32 v%d, s%d, v%d" % (ga, S_T0, la))
    for i in range(mi):
        g("ds_read_b64 %s, v%d offset:%d" % (vr(pr, 2), la, i * 32 * 8))
        g("s_waitcnt lgkmcnt(0)")
        g("v_sub_f32 v%d, v%d, v%d" % (dd, pr, mean[i]))
        g("v_add_f32 v%d, v%d, v%d" % (pr, pr, mean[i]))
        g("v_mul_f32 v%d, 0.5, v%d" % (pr, pr))
        g("v_add_f32 v%d, v%d, v%d" % (pr + 1, pr + 1, m2[i]))
        g("v_mul_f32 v%d, v%d, v%d" % (dd, dd, dd))
        g("v_mov_b32 v%d, 0x%x" % (u, f2u(nw / 2.0)))
        g("v_fmac_f32 v%d, v%d, v%d" % (pr + 1, dd, u))
        g.vmem("buffer_store_dwordx2 %s, v%d, s[%d:%d], 0 offen offset:%d" % (vr(pr, 2), ga, SRD_E, SRD_E + 3, i * 32 * 8), ("ST", 0))
        g("s_nop 1")
    g.lab("%s_st2" % c.name)
    g("s_mov_b64 exec, s[60:61]")
    g.lab("%s_nostats" % c.name)


def pre_k2(g, c, ectx, L):
    mi, nj, vL = L['mi'], L['nj'], L['vL']
    a, t = out_addr(g, c, L, F_ * 2)
    g("v_lshrrev_b32 v%d, 5, v%d" % (t, vL))
    g("v_lshl_add_u32 v%d, v%d, 3, v%d" % (a, t, a))
    Z = [[g.valloc(8, 2) for _ in range(nj)] for _ in range(mi)]
    ectx['Z'] = Z
    for i in range(mi):
        for j in range(nj):
            for q in range(4):
                g("s_mov_b32 s%d, %d" % (S_T0, i * 32 * F_ * 2))
                g.vmem("buffer_load_dwordx2 %s, v%d, s[%d:%d], s%d offen offset:%d" % (vr(Z[i][j] + 2 * q, 2), a, SRD_D, SRD_D + 3, S_T0, j * 64 + q * 16), ("Z", 0))
    bb = [g.valloc(1) for _ in range(mi)]
    ectx['bb'] = bb
    r = g.valloc(1)
    g("v_and_b32 v%d, 31, v%d" % (r, vL))
    g("v_mul_u32_u24 v%d, %d, v%d" % (t, c.WM, L['vWm']))
    g("v_add_u32 v%d, v%d, v%d" % (r, r, t))
    g("s_mul_i32 s%d, s%d, %d" % (S_T0, S_TM, c.BM))
    g("v_add_u32 v%d, s%d, v%d" % (r, S_T0, r))
    g("v_lshlrev_b32 v%d, 1, v%d" % (r, r))
    mk_srd(g, 28, 'b_sp', 0, S_ * 2)
    for i in range(mi):
        g.vmem("buffer_load_ushort v%d, v%d, s[28:31], 0 offen offset:%d" % (bb[i], r, i * 64), ("Z", 0))


def epi_k2(g, c, ectx, L):
    acc, mi, nj, vL = L['acc'], L['mi'], L['nj'], L['vL']
    Z, bb = ectx['Z'], ectx['bb']
    a, t = out_addr(g, c, L, FH * 2)
    a16 = g.valloc(1)
    g("v_lshrrev_b32 v%d, 5, v%d" % (t, vL))
    g("v_lshl_add_u32 v%d, v%d, 4, v%d" % (a16, t, a))
    g.wait_vm(("Z", 0))
    X = g.valloc(2, 2); Y = g.valloc(2, 2); pk = g.valloc(1); B2 = g.valloc(2, 2)
    Ps = [g.valloc(8, 4) for _ in range(2)]
    arow = [a16] + [g.valloc(1) for _ in range(mi - 1)]
    for i in range(1, mi):
        g("v_add_u32 v%d, %d, v%d" % (arow[i], i * 32 * FH * 2, a16))
    n = 0
    for i in range(mi):
        g("v_lshlrev_b32 v%d, 16, v%d" % (B2, bb[i]))
        g("v_lshlrev_b32 v%d, 16, v%d" % (B2 + 1, bb[i]))
        for j in range(nj):
            P = Ps[n & 1]; n += 1
            A = acc[i][j]
            for r in range(0, 16, 2):
                g("v_cvt_pk_bf16_f32 v%d, v%d, v%d" % (pk, A + r, A + r + 1))
                g("v_lshlrev_b32 v%d, 16, v%d" % (X, pk))
                g("v_and_b32 v%d, 0xffff0000, v%d" % (X + 1, pk))
                g("v_pk_add_f32 %s, %s, %s" % (vr(X, 2), vr(X, 2), vr(B2, 2)))
                g("v_cvt_pk_bf16_f32 v%d, v%d, v%d" % (pk, X, X + 1))
                g("v_lshlrev_b32 v%d, 16, v%d" % (X, pk))
                g("v_and_b32 v%d, 0xffff0000, v%d" % (X + 1, pk))
                z = Z[i][j] + r // 2
                g("v_lshlrev_b32 v%d, 16, v%d" % (Y, z))
                g("v_and_b32 v%d, 0xffff0000, v%d" % (Y + 1, z))
                g("v_pk_mul_f32 %s, %s, %s" % (vr(X, 2), vr(X, 2), vr(Y, 2)))
                g("v_cvt_pk_bf16_f32 v%d, v%d, v%d" % (P + r // 2, X, X + 1))
            store_tile(g, P, arow[i], SRD_C, j * 64)


def epi_k3(g, c, ectx, L):
    acc, mi, nj, vL = L['acc'], L['mi'], L['nj'], L['vL']
    a, t = out_addr(g, c, L, D_ * 2)
    a16 = g.valloc(1)
    g("v_lshrrev_b32 v%d, 5, v%d" % (t, vL))
    g("v_lshl_add_u32 v%d, v%d, 4, v%d" % (a16, t, a))
    Ps = [g.valloc(8, 4) for _ in range(2)]
    arow = [a16] + [g.valloc(1) for _ in range(mi - 1)]
    for i in range(1, mi):
        g("v_add_u32 v%d, %d, v%d" % (arow[i], i * 32 * D_ * 2, a16))
    n = 0
    for i in range(mi):
        for j in range(nj):
            P = Ps[n & 1]; n += 1
            A = acc[i][j]
            for r in range(0, 16, 2):
                g("v_cvt_pk_bf16_f32 v%d, v%d, v%d" % (P + r // 2, A + r, A + r + 1))
            store_tile(g, P, arow[i], SRD_C, j * 64)


def main():
    k1 = Cfg()
    k1.name = "gemm1_kernel"; k1.K = D_; k1.BM = 128; k1.BN = 128; k1.BK = 64; k1.WM = 64; k1.WN = 64
    k1.DA = 3; k1.lda = D_ * 2; k1.ldb = F_ * 2; k1.TM = 16; k1.TN = 14; k1.ln = False
    k1.a_buf = ('x', 0, S_ * D_ * 2); k1.b_buf = ('w_in', 0, D_ * F_ * 2); k1.c_buf = ('ws', WS_Z, S_ * F_ * 2)
    k1.e_buf = ('ws', WS_ST, 7 * 2048 * 8)
    k1.epi = epi_k1

    k2 = Cfg()
    k2.name = "gemm2_kernel"; k2.K = S_; k2.BM = 128; k2.BN = 64; k2.BK = 64; k2.WM = 32; k2.WN = 64
    k2.DA = 3; k2.DB = 4; k2.lda = S_ * 2; k2.ldb = F_ * 2; k2.TM = 16; k2.TN = 14; k2.ln = True
    k2.b_col0 = FH
    k2.a_buf = ('w_sp', 0, S_ * S_ * 2); k2.b_buf = ('ws', WS_Z, S_ * F_ * 2); k2.c_buf = ('ws', WS_H, S_ * FH * 2)
    k2.d_buf = ('ws', WS_Z, S_ * F_ * 2); k2.e_buf = ('ws', WS_ST, 7 * 2048 * 8)
    k2.pre = pre_k2; k2.epi = epi_k2

    k3 = Cfg()
    k3.name = "gemm3_kernel"; k3.K = FH; k3.BM = 64; k3.BN = 64; k3.BK = 128; k3.WM = 32; k3.WN = 32
    k3.DA = 3; k3.lda = FH * 2; k3.ldb = D_ * 2; k3.TM = 32; k3.TN = 7; k3.ln = False
    k3.a_buf = ('ws', WS_H, S_ * FH * 2); k3.b_buf = ('w_out', 0, FH * D_ * 2); k3.c_buf = ('out', 0, S_ * D_ * 2)
    k3.epi = epi_k3

    ks = [k1, k2, k3]
    gs = [gen_kernel(k) for k in ks]
    out = []
    hdr = open("standalone__mixer_gmlp__prompt.s.ref").read().splitlines()
    for ln in hdr:
        if ln.startswith(";") and "@launch" not in ln:
            out.append(ln)
    for k in ks:
        out.append("; @launch kernel=%s grid=(%d,1,1) block=(256,1,1) lds=%d" % (k.name, k.TM * k.TN, k.lds))
    out.append('.amdgcn_target "amdgcn-amd-amdhsa--gfx950"')
    out.append(".text")
    for k, g in zip(ks, gs):
        out.append(".globl %s" % k.name)
        out.append(".p2align 8")
        out.append(".type %s,@function" % k.name)
        out += g.L
    out.append('.section .rodata,"a"')
    for k in ks:
        nv = max(k.nvgpr, 8)
        ao = (nv + 3) // 4 * 4
        out.append(".p2align 6")
        out.append(".amdhsa_kernel %s" % k.name)
        out.append("  .amdhsa_next_free_vgpr %d" % nv)
        out.append("  .amdhsa_next_free_sgpr 96")
        out.append("  .amdhsa_accum_offset %d" % ao)
        out.append("  .amdhsa_group_segment_fixed_size 0")
        out.append("  .amdhsa_kernarg_size 64")
        out.append("  .amdhsa_user_sgpr_count 2")
        out.append("  .amdhsa_user_sgpr_kernarg_segment_ptr 1")
        out.append("  .amdhsa_system_sgpr_workgroup_id_x 1")
        out.append("  .amdhsa_float_denorm_mode_32 3")
        out.append(".end_amdhsa_kernel")
        sys.stderr.write("%s: vgpr=%d lds=%d\n" % (k.name, k.nvgpr, k.lds))
    open(sys.argv[1] if len(sys.argv) > 1 else "standalone__mixer_gmlp__prompt.s", "w").write("\n".join(out) + "\n")


main()
```

```python
import sys, struct, math, os
STAMP = os.environ.get('STAMP', '')
ABL = os.environ.get('ABL', '')

S_, D_, F_, FH = 2048, 448, 1792, 896
WS_Z = 0
WS_ST = 0x800000
WS_H = 0x900000


def f2u(x):
    return struct.unpack('<I', struct.pack('<f', x))[0]


def log2(x):
    l = x.bit_length() - 1
    assert 1 << l == x, x
    return l


def lcm(a, b):
    return a * b // math.gcd(a, b)


class G:
    def __init__(self):
        self.L = []
        self.vm = []
        self.nv = 0
        self.nvmax = 0

    def __call__(self, s):
        self.L.append("  " + s)

    def lab(self, s):
        self.L.append(s + ":")

    def nop(self, n):
        while n > 0:
            k = min(n, 16)
            self("s_nop %d" % (k - 1))
            n -= k

    def vmem(self, s, tag):
        self(s)
        self.vm.append(tag)

    def wait_vm(self, tag, extra=""):
        idx = -1
        for i, t in enumerate(self.vm):
            if t == tag:
                idx = i
        if idx < 0:
            if extra:
                self("s_waitcnt " + extra)
            return
        n = len(self.vm) - 1 - idx
        assert n <= 63
        self("s_waitcnt vmcnt(%d) %s" % (n, extra))
        self.vm = self.vm[idx + 1:]

    def valloc(self, n, align=1):
        self.nv = (self.nv + align - 1) // align * align
        r = self.nv
        self.nv += n
        self.nvmax = max(self.nvmax, self.nv)
        return r

    def collapse(self, stage_txt, U, name, cnt_sgpr):
        nst = len(stage_txt)
        grp = [sum(stage_txt[s0:s0 + U], []) for s0 in range(0, nst, U)]
        i = 0
        nloop = 0
        while i < len(grp):
            j = i
            while j + 1 < len(grp) and grp[j + 1] == grp[i]:
                j += 1
            cnt = j - i + 1
            if cnt >= 2:
                lab = "%s_loop%d" % (name, nloop)
                nloop += 1
                self("s_mov_b32 s%d, %d" % (cnt_sgpr, cnt))
                self.lab(lab)
                self.L += grp[i]
                self("s_sub_u32 s%d, s%d, 1" % (cnt_sgpr, cnt_sgpr))
                self("s_cmp_lg_u32 s%d, 0" % cnt_sgpr)
                self("s_cbranch_scc1 %s" % lab)
            else:
                self.L += grp[i]
            i = j + 1


def vr(b, n=1):
    return "v%d" % b if n == 1 else "v[%d:%d]" % (b, b + n - 1)


class Cfg:
    pass


SRD_A, SRD_B, SRD_C, SRD_D, SRD_E, SRD_F = 8, 12, 16, 20, 24, 28
S_TM, S_TN, S_W, S_SOA, S_SOB = 48, 49, 50, 51, 52
S_M0A, S_M0B, S_CNT, S_T0, S_T1, S_T2, S_T3 = 53, 54, 55, 56, 57, 58, 59
PTR = dict(x=32, w_in=34, w_sp=36, b_sp=38, w_out=40, out=42, dbg=44, ws=46)


def mk_srd(g, srd, ptr, off, nbytes):
    p = PTR[ptr]
    if off:
        g("s_add_u32 s%d, s%d, 0x%x" % (srd, p, off))
        g("s_addc_u32 s%d, s%d, 0" % (srd + 1, p + 1))
    else:
        g("s_mov_b32 s%d, s%d" % (srd, p))
        g("s_mov_b32 s%d, s%d" % (srd + 1, p + 1))
    g("s_and_b32 s%d, s%d, 0xffff" % (srd + 1, srd + 1))
    g("s_mov_b32 s%d, 0x%x" % (srd + 2, nbytes))
    g("s_mov_b32 s%d, 0x20000" % (srd + 3))


def stamp(g, k):
    if STAMP:
        g("s_memrealtime s[%d:%d]" % (64 + 2 * k, 65 + 2 * k))
        g("s_waitcnt lgkmcnt(0)")


def stamp_flush(g, c, n):
    if not STAMP:
        return
    g("s_and_b32 s%d, s%d, 3" % (S_T0, S_T3))
    g("s_cmp_lg_u32 s%d, 0" % S_T0)
    g("s_cbranch_scc1 %s_nostamp" % (c.name))
    mk_srd(g, 88, 'ws', 0x2000000 + c.kid * 0x10000, 0x10000)
    g("s_lshl_b32 s%d, s2, 7" % S_T0)
    g("s_lshl_b32 s%d, s%d, 4" % (S_T1, S_T3))
    g("s_add_u32 s%d, s%d, s%d" % (S_T0, S_T0, S_T1))
    g("v_mov_b32 v1, s%d" % S_T0)
    for k in range(n):
        g("v_mov_b32 v2, s%d" % (64 + 2 * k))
        g("buffer_store_dword v2, v1, s[88:91], 0 offen offset:%d" % (4 * k))
        g("s_nop 1")
    g.lab("%s_nostamp" % (c.name))


def interleave(g, emit_main, slots):
    save = g.L
    g.L = []
    emit_main()
    main = g.L
    g.L = save
    n = len(slots)
    if n == 0:
        g.L += main
        return
    step = max(1, len(main) // n)
    pos = 0
    for k, sfn in enumerate(slots):
        sfn()
        end = len(main) if k == n - 1 else min(len(main), pos + step)
        g.L += main[pos:end]
        pos = end


def gen_kernel(c):
    g = G()
    name = c.name
    NP = 4
    RA = c.BK * 2
    RB = c.BN * 2
    PPA, PPB = RA // 16, RB // 16
    ASZ, BSZ = c.BM * RA, c.BK * RB
    nA = ASZ // 1024 // NP
    nB = BSZ // 1024 // NP
    mi, nj, nks = c.WM // 32, c.WN // 32, c.BK // 16
    wpn = c.BN // c.WN
    nst = c.K // c.BK
    RSA = c.slots
    RSB = c.slots
    LDS_A0 = 0
    LDS_B0 = RSA * ASZ
    LDS_T0 = LDS_B0 + RSB * BSZ
    lds_total = LDS_T0 + (2048 * 8 if c.ln else 0)
    ERS = c.BN * 4 + 16
    lds_total = max(lds_total, c.BM * ERS)
    assert lds_total <= 160 * 1024, lds_total
    c.lds = lds_total
    CPR = c.BN // 8
    RPP = 512 // CPR
    NPASS = c.BM // RPP

    g.lab(name)
    g("s_cmp_ge_u32 s2, %d" % (c.TM * c.TN))
    g("s_cbranch_scc1 %s_end" % name)
    stamp(g, 0)
    g("s_load_dwordx16 s[32:47], s[0:1], 0")
    g("s_and_b32 s%d, s2, 7" % S_T0)
    g("s_lshr_b32 s%d, s2, 3" % S_T1)
    g("s_and_b32 s%d, s%d, 3" % (S_TM, S_T1))
    g("s_lshr_b32 s%d, s%d, 2" % (S_TN, S_T1))
    if c.TN == 14:
        g("s_lshr_b32 s%d, s%d, 1" % (S_T2, S_T0))
        g("s_lshl_b32 s%d, s%d, 2" % (S_T2, S_T2))
        g("s_add_u32 s%d, s%d, s%d" % (S_TM, S_TM, S_T2))
        g("s_and_b32 s%d, s%d, 1" % (S_T2, S_T0))
        g("s_mul_i32 s%d, s%d, 7" % (S_T2, S_T2))
        g("s_add_u32 s%d, s%d, s%d" % (S_TN, S_TN, S_T2))
    else:
        assert c.TN == 7
        g("s_lshl_b32 s%d, s%d, 2" % (S_T2, S_T0))
        g("s_add_u32 s%d, s%d, s%d" % (S_TM, S_TM, S_T2))
    g.nv = 1
    vL = g.valloc(1)
    vW = g.valloc(1)
    t0 = g.valloc(1); t1 = g.valloc(1); t2 = g.valloc(1); t3 = g.valloc(1)
    g("v_and_b32 v%d, 63, v0" % vL)
    g("v_lshrrev_b32 v%d, 6, v0" % vW)
    g("s_nop 0")
    g("v_readfirstlane_b32 s%d, v%d" % (S_W, vW))
    g("v_and_b32 v%d, 3, v%d" % (vW, vW))
    E = {}
    E['row'] = g.valloc(1)
    E['la'] = g.valloc(1)
    E['co'] = g.valloc(1)
    c.epi_regs(g, c, E, NPASS)
    g("s_mov_b32 s%d, s%d" % (S_T3, S_W))
    g("s_cmp_lt_u32 s%d, 4" % S_W)
    g("s_cbranch_scc1 %s_cons" % name)
    common_nv = g.nv

    def epi_setup():
        g("v_lshrrev_b32 v%d, %d, v0" % (E['row'], log2(CPR)))
        g("v_and_b32 v%d, %d, v0" % (t0, CPR - 1))
        g("v_mul_u32_u24 v%d, %d, v%d" % (t1, ERS, E['row']))
        g("v_lshl_add_u32 v%d, v%d, 5, v%d" % (E['la'], t0, t1))
        g("s_mul_i32 s%d, s%d, %d" % (S_T0, S_TM, c.BM))
        g("v_add_u32 v%d, s%d, v%d" % (t1, S_T0, E['row']))
        g("s_mov_b32 s%d, %d" % (S_T1, c.ldc))
        g("v_mul_lo_u32 v%d, v%d, s%d" % (t2, t1, S_T1))
        g("s_mul_i32 s%d, s%d, %d" % (S_T0, S_TN, c.BN * 2))
        g("v_lshl_add_u32 v%d, v%d, 4, v%d" % (t3, t0, t2))
        g("v_add_u32 v%d, s%d, v%d" % (E['co'], S_T0, t3))
        c.epi_pre(g, c, E, NPASS, RPP, (t0, t1, t2, t3))

    split = c.ln
    NL = c.nload if split else 0
    rpcA, rpcB = 1024 // RA, 1024 // RB

    def a_offsets(nw, vWx):
        n = ASZ // 1024 // nw
        vAs = [g.valloc(1) for _ in range(n)]
        g("s_mul_i32 s%d, s%d, %d" % (S_T0, S_TM, c.BM * c.lda))
        g("s_mov_b32 s%d, %d" % (S_T1, c.lda))
        for q in range(n):
            g("v_lshrrev_b32 v%d, %d, v%d" % (t0, log2(PPA), vL))
            g("v_mul_u32_u24 v%d, %d, v%d" % (t1, n * rpcA, vWx))
            g("v_add3_u32 v%d, v%d, v%d, %d" % (t0, t0, t1, q * rpcA))
            if PPA == 8:
                g("v_bfe_u32 v%d, v%d, 1, 3" % (t1, t0))
            else:
                assert PPA == 16
                g("v_and_b32 v%d, 15, v%d" % (t1, t0))
            g("v_and_b32 v%d, %d, v%d" % (t2, PPA - 1, vL))
            g("v_xor_b32 v%d, v%d, v%d" % (t2, t2, t1))
            g("v_lshlrev_b32 v%d, 4, v%d" % (t2, t2))
            g("v_mul_lo_u32 v%d, v%d, s%d" % (t0, t0, S_T1))
            g("v_add3_u32 v%d, v%d, v%d, s%d" % (vAs[q], t0, t2, S_T0))
        return vAs

    def a_dma(vAs, st):
        sl = st % RSA
        for q in range(len(vAs)):
            g("s_add_u32 m0, s%d, %d" % (S_M0A, LDS_A0 + sl * ASZ + q * 1024))
            g("s_nop 0")
            g.vmem("buffer_load_dwordx4 v%d, s[%d:%d], s%d offen lds" % (vAs[q], SRD_A, SRD_A + 3, S_SOA), st)
        g("s_add_u32 s%d, s%d, %d" % (S_SOA, S_SOA, c.BK * 2))

    if split:
        g("s_cmp_lt_u32 s%d, 8" % S_W)
        g("s_cbranch_scc1 %s_bw" % name)
        vAs = a_offsets(NL, vW)
        nAl = len(vAs)
        DA = c.DA
        vAw = g.valloc(1)
        g("v_mul_u32_u24 v%d, %d, v%d" % (t0, nAl * 1024, vW))
        g("v_lshl_add_u32 v%d, v%d, 4, v%d" % (vAw, vL, t0))
        vAr = [[g.valloc(4, 2) for _ in range(nAl)] for _ in range(DA)]
        g("s_mov_b32 s%d, 0" % S_SOA)
        g("s_waitcnt lgkmcnt(0)")
        mk_srd(g, SRD_A, *c.a_buf)

        def a_slots(st):
            rs = st % DA
            out = []
            if 'noAl' in ABL:
                return out
            for q in range(nAl):
                def f(q=q):
                    g.vmem("buffer_load_dwordx4 %s, v%d, s[%d:%d], s%d offen" % (vr(vAr[rs][q], 4), vAs[q], SRD_A, SRD_A + 3, S_SOA), st)
                    if q == nAl - 1:
                        g("s_add_u32 s%d, s%d, %d" % (S_SOA, S_SOA, c.BK * 2))
                out.append(f)
            return out

        def a_write(st):
            if 'noAw' in ABL:
                return
            for q in range(nAl):
                g("ds_write_b128 v%d, %s offset:%d" % (vAw, vr(vAr[st % DA][q], 4), (st % RSA) * ASZ + q * 1024))

        for st in range(2):
            for f in a_slots(st):
                f()
        g("s_barrier")
        for st in range(2, DA):
            for f in a_slots(st):
                f()
        g.wait_vm(0)
        a_write(0)
        g.wait_vm(1)
        a_write(1)
        g("s_waitcnt lgkmcnt(0)")
        g.wait_vm(2)
        interleave(g, lambda: a_write(2), a_slots(DA) + a_slots(DA + 1))
        save = g.L
        stage_txt = []
        for b in range(nst):
            g.L = []
            g("s_barrier")
            if b + 3 < nst:
                g.wait_vm(b + 3)
                interleave(g, lambda: a_write(b + 3), a_slots(b + 2 + DA) if b + 2 + DA < nst else [])
                g("s_waitcnt lgkmcnt(%d)" % (0 if 'noAw' in ABL else nAl))
            elif b + 2 < nst:
                g("s_waitcnt lgkmcnt(0)")
            stage_txt.append(g.L)
        g.L = save
        g.collapse(stage_txt, lcm(RSA, DA), name + "_l", S_CNT)
        g("s_endpgm")
        g.vm = []
        g.lab("%s_bw" % name)
        g.nv = common_nv

    g("s_sub_u32 s%d, s%d, 4" % (S_W, S_W))
    if not split:
        vAs = a_offsets(NP, vW)
    vBs = [g.valloc(1) for _ in range(nB)]
    g("s_mul_i32 s%d, s%d, %d" % (S_T0, S_TN, c.BN * 2))
    if getattr(c, 'b_col0', 0):
        g("s_add_u32 s%d, s%d, %d" % (S_T0, S_T0, c.b_col0 * 2))
    g("s_mov_b32 s%d, %d" % (S_T1, c.ldb))
    vBrow = []
    for q in range(nB):
        g("v_lshrrev_b32 v%d, %d, v%d" % (t0, log2(PPB), vL))
        g("v_mul_u32_u24 v%d, %d, v%d" % (t1, nB * rpcB, vW))
        g("v_add3_u32 v%d, v%d, v%d, %d" % (t0, t0, t1, q * rpcB))
        if c.ln:
            r = g.valloc(1)
            vBrow.append(r)
            g("v_lshlrev_b32 v%d, 3, v%d" % (r, t0))
            g("v_add_u32 v%d, %d, v%d" % (r, LDS_T0, r))
        if PPB == 8:
            g("v_bfe_u32 v%d, v%d, 1, 1" % (t1, t0))
        else:
            assert PPB == 16
            g("v_and_b32 v%d, 3, v%d" % (t1, t0))
        g("v_lshlrev_b32 v%d, 2, v%d" % (t1, t1))
        g("v_and_b32 v%d, %d, v%d" % (t2, PPB - 1, vL))
        g("v_xor_b32 v%d, v%d, v%d" % (t2, t2, t1))
        g("v_lshlrev_b32 v%d, 4, v%d" % (t2, t2))
        g("v_mul_lo_u32 v%d, v%d, s%d" % (t0, t0, S_T1))
        g("v_add3_u32 v%d, v%d, v%d, s%d" % (vBs[q], t0, t2, S_T0))
    if split:
        DB = c.DB
        vBw = g.valloc(1)
        g("v_mul_u32_u24 v%d, %d, v%d" % (t0, nB * 1024, vW))
        g("v_lshl_add_u32 v%d, v%d, 4, v%d" % (vBw, vL, t0))
        g("v_add_u32 v%d, %d, v%d" % (vBw, LDS_B0, vBw))
        vBr = [[g.valloc(4, 2) for _ in range(nB)] for _ in range(DB)]
        xblk = g.valloc(56, 2)
        vTab = [[xblk + 2 * (h * nB + q) for q in range(nB)] for h in range(2)]
        vX = [xblk + 4 * nB + 8 * q for q in range(nB)]
        vO = [[xblk + 12 * nB + 4 * (h * nB + q) for q in range(nB)] for h in range(2)]
    else:
        g("s_mul_i32 s%d, s%d, %d" % (S_M0A, S_W, len(vAs) * 1024))
        g("s_mul_i32 s%d, s%d, %d" % (S_M0B, S_W, nB * 1024))
        g("s_add_u32 s%d, s%d, %d" % (S_M0B, S_M0B, LDS_B0))
        g("s_mov_b32 s%d, 0" % S_SOA)
    g("s_mov_b32 s%d, 0" % S_SOB)
    g("s_waitcnt lgkmcnt(0)")
    if not split:
        mk_srd(g, SRD_A, *c.a_buf)
    mk_srd(g, SRD_B, *c.b_buf)
    if hasattr(c, 'e_buf'):
        mk_srd(g, SRD_E, *c.e_buf)
    pctx = {}

    def b_dma(st):
        sl = st % RSB
        for q in range(nB):
            g("s_add_u32 m0, s%d, %d" % (S_M0B, sl * BSZ + q * 1024))
            g("s_nop 0")
            g.vmem("buffer_load_dwordx4 v%d, s[%d:%d], s%d offen lds" % (vBs[q], SRD_B, SRD_B + 3, S_SOB), st)
        g("s_add_u32 s%d, s%d, %d" % (S_SOB, S_SOB, c.BK * c.ldb))

    def reg_slots(st):
        rs = st % DB
        out = []
        if 'noBl' in ABL:
            return out
        for q in range(nB):
            def f(q=q):
                g.vmem("buffer_load_dwordx4 %s, v%d, s[%d:%d], s%d offen" % (vr(vBr[rs][q], 4), vBs[q], SRD_B, SRD_B + 3, S_SOB), ("B", st))
                if q == nB - 1:
                    g("s_add_u32 s%d, s%d, %d" % (S_SOB, S_SOB, c.BK * c.ldb))
            out.append(f)
        return out

    def tab_read(st):
        for q in range(nB):
            g("ds_read_b64 %s, v%d" % (vr(vTab[st & 1][q], 2), vBrow[q]))
        for q in range(nB):
            g("v_add_u32 v%d, %d, v%d" % (vBrow[q], c.BK * 8, vBrow[q]))

    def write_body(st):
        rs = st % DB
        sl = st % RSB
        if 'noBw' in ABL:
            return
        for d in range(4):
            for q in range(nB):
                src = vBr[rs][q]
                g("v_lshlrev_b32 v%d, 16, v%d" % (vX[q] + 2 * d, src + d))
                g("v_and_b32 v%d, 0xffff0000, v%d" % (vX[q] + 2 * d + 1, src + d))
        for d in range(4):
            for q in range(nB):
                T = vTab[st & 1][q]
                for h in range(2):
                    g("v_fma_f32 v%d, v%d, v%d, v%d" % (vX[q] + 2 * d + h, vX[q] + 2 * d + h, T, T + 1))
        for d in range(4):
            for q in range(nB):
                g("v_cvt_pk_bf16_f32 v%d, v%d, v%d" % (vO[st & 1][q] + d, vX[q] + 2 * d, vX[q] + 2 * d + 1))
        for q in range(nB):
            g("ds_write_b128 v%d, %s offset:%d" % (vBw, vr(vO[st & 1][q], 4), sl * BSZ + q * 1024))

    mk_srd(g, SRD_C, *c.c_buf)
    if hasattr(c, 'd_buf'):
        mk_srd(g, SRD_D, *c.d_buf)
    if split:
        stats_issue(g, c, pctx, xblk)
        for st in range(2):
            for f in reg_slots(st):
                f()
        stats_finish(g, c, pctx, LDS_T0)
        for st in range(2, DB):
            for f in reg_slots(st):
                f()
        tab_read(0)
        tab_read(1)
        epi_setup()
        g.wait_vm(("B", 0), "lgkmcnt(0)")
        write_body(0)
        tab_read(2)
        g.wait_vm(("B", 1))
        write_body(1)
        g("s_waitcnt lgkmcnt(0)")
        tab_read(3)
        g.wait_vm(("B", 2))
        interleave(g, lambda: write_body(2), reg_slots(DB) + reg_slots(DB + 1))
    else:
        for st in range(min(RSA, nst)):
            a_dma(vAs, st)
            b_dma(st)
        epi_setup()
        g.wait_vm(1)
    stamp(g, 1)
    save = g.L
    stage_txt = []
    for b in range(nst):
        g.L = []
        g("s_barrier")
        if split:
            if b + 3 < nst:
                g.wait_vm(("B", b + 3), "lgkmcnt(%d)" % (0 if 'noBw' in ABL else nB))
                if b + 4 < nst:
                    tab_read(b + 4)
                interleave(g, lambda: write_body(b + 3), reg_slots(b + 2 + DB) if b + 2 + DB < nst else [])
                g("s_waitcnt lgkmcnt(%d)" % ((0 if 'noBw' in ABL else nB) + (nB if b + 4 < nst else 0)))
            elif b + 2 < nst:
                g("s_waitcnt lgkmcnt(0)")
        else:
            if b >= 1 and b - 1 + RSA < nst:
                a_dma(vAs, b - 1 + RSA)
                b_dma(b - 1 + RSA)
            if b + 2 < nst:
                g.wait_vm(b + 2)
        stage_txt.append(g.L)
    g.L = save
    U = lcm(lcm(RSB, DB), 2) if split else RSA
    g.collapse(stage_txt, U, name + "_p", S_CNT)
    stamp(g, 2)
    g("s_barrier")
    g("s_branch %s_epi" % name)
    g.vm = []

    g.lab("%s_cons" % name)
    g.nv = common_nv
    vWm = g.valloc(1); vWn = g.valloc(1)
    g("v_lshrrev_b32 v%d, %d, v%d" % (vWm, log2(wpn), vW))
    g("v_and_b32 v%d, %d, v%d" % (vWn, wpn - 1, vW))
    PD = c.PD
    NBUF = PD + 1
    blk = g.valloc(16 * mi * nj + NBUF * 4 * (mi + nj), 4)
    acc = [[blk + 16 * (i * nj + j) for j in range(nj)] for i in range(mi)]
    fb0 = blk + 16 * mi * nj
    fA = [[fb0 + 4 * (b * mi + i) for i in range(mi)] for b in range(NBUF)]
    fB = [[fb0 + 4 * NBUF * mi + 4 * (b * nj + j) for j in range(nj)] for b in range(NBUF)]
    ectx = {}
    g("s_waitcnt lgkmcnt(0)")
    mk_srd(g, SRD_C, *c.c_buf)
    if hasattr(c, 'd_buf'):
        mk_srd(g, SRD_D, *c.d_buf)
    if hasattr(c, 'e_buf'):
        mk_srd(g, SRD_E, *c.e_buf)
    if c.ln:
        stats_issue(g, c, ectx, blk)
    epi_setup()

    vAf = g.valloc(1)
    g("v_and_b32 v%d, 31, v%d" % (t0, vL))
    g("v_mul_u32_u24 v%d, %d, v%d" % (t1, c.WM, vWm))
    g("v_add_u32 v%d, v%d, v%d" % (t0, t0, t1))
    vXw = g.valloc(1)
    g("v_mul_u32_u24 v%d, %d, v%d" % (vXw, ERS, t0))
    g("v_mul_u32_u24 v%d, %d, v%d" % (t2, c.WN * 4, vWn))
    g("v_add_u32 v%d, v%d, v%d" % (vXw, vXw, t2))
    g("v_lshrrev_b32 v%d, 5, v%d" % (t2, vL))
    g("v_lshl_add_u32 v%d, v%d, 4, v%d" % (vXw, t2, vXw))
    if PPA == 8:
        g("v_bfe_u32 v%d, v%d, 1, 3" % (t1, t0))
    else:
        g("v_and_b32 v%d, 15, v%d" % (t1, t0))
    g("v_lshrrev_b32 v%d, 5, v%d" % (t2, vL))
    g("v_xor_b32 v%d, v%d, v%d" % (t2, t2, t1))
    g("v_lshlrev_b32 v%d, 4, v%d" % (t2, t2))
    g("v_lshlrev_b32 v%d, %d, v%d" % (t0, log2(RA), t0))
    g("v_add_u32 v%d, v%d, v%d" % (vAf, t0, t2))
    vBf = g.valloc(1)
    g("v_lshrrev_b32 v%d, 5, v%d" % (t0, vL))
    g("v_lshlrev_b32 v%d, 3, v%d" % (t0, t0))
    g("v_bfe_u32 v%d, v%d, 2, 2" % (t1, vL))
    g("v_add_u32 v%d, v%d, v%d" % (t0, t0, t1))
    if PPB == 8:
        g("v_lshrrev_b32 v%d, 1, v%d" % (t1, t1))
    g("v_lshlrev_b32 v%d, 2, v%d" % (t1, t1))
    g("v_mul_u32_u24 v%d, %d, v%d" % (t2, c.WN // 8, vWn))
    g("v_bfe_u32 v%d, v%d, 4, 1" % (t3, vL))
    g("v_lshl_add_u32 v%d, v%d, 1, v%d" % (t2, t3, t2))
    g("v_bfe_u32 v%d, v%d, 1, 1" % (t3, vL))
    g("v_add_u32 v%d, v%d, v%d" % (t2, t2, t3))
    g("v_xor_b32 v%d, v%d, v%d" % (t2, t2, t1))
    g("v_lshlrev_b32 v%d, 4, v%d" % (t2, t2))
    g("v_lshlrev_b32 v%d, %d, v%d" % (t0, log2(RB), t0))
    g("v_add_u32 v%d, v%d, v%d" % (t0, t0, t2))
    g("v_and_b32 v%d, 1, v%d" % (t3, vL))
    g("v_lshl_add_u32 v%d, v%d, 3, v%d" % (vBf, t3, t0))
    g("v_add_u32 v%d, %d, v%d" % (vBf, LDS_B0, vBf))
    vAfs = [[g.valloc(1) for _ in range(nks)] for _ in range(RSA)]
    vBfs = [[g.valloc(1) for _ in range(nj)] for _ in range(RSB)]
    for sl in range(RSA):
        for ks in range(nks):
            g("v_xor_b32 v%d, %d, v%d" % (vAfs[sl][ks], ks * 32, vAf))
            if sl:
                g("v_add_u32 v%d, %d, v%d" % (vAfs[sl][ks], sl * ASZ, vAfs[sl][ks]))
    for sl in range(RSB):
        for j in range(nj):
            g("v_xor_b32 v%d, %d, v%d" % (vBfs[sl][j], j * 64, vBf))
            if sl:
                g("v_add_u32 v%d, %d, v%d" % (vBfs[sl][j], sl * BSZ, vBfs[sl][j]))
    if c.ln:
        stats_finish(g, c, ectx, LDS_T0)
    for i in range(mi):
        for j in range(nj):
            for r in range(16):
                g("v_mov_b32 v%d, 0" % (acc[i][j] + r))

    def frag_reads(st, ks, buf):
        sl = st % RSB
        sa = st % RSA
        if 'noread' in ABL:
            return
        for j in range(nj):
            for h in range(2):
                g("ds_read_b64_tr_b16 %s, v%d offset:%d" % (vr(fB[buf][j] + 2 * h, 2), vBfs[sl][j], (ks * 16 + 4 * h) * RB))
        for i in range(mi):
            g("ds_read_b128 %s, v%d offset:%d" % (vr(fA[buf][i], 4), vAfs[sa][ks], i * 32 * RA))

    stamp(g, 1)
    save = g.L
    stage_txt = []
    step = 0
    nsteps = nst * nks
    nfr = mi + 2 * nj
    assert PD * nfr <= 15 and PD <= nks
    for st in range(nst):
        g.L = []
        g("s_barrier")
        if st == 0:
            for k in range(PD):
                frag_reads(k // nks, k % nks, k % NBUF)
        for ks in range(nks):
            k = step + PD
            if k < nsteps:
                frag_reads(k // nks, k % nks, k % NBUF)
            outstanding = min(PD, nsteps - 1 - step) * nfr
            if 'noread' in ABL:
                outstanding = 0
            g("s_waitcnt lgkmcnt(%d)" % outstanding)
            b = step % NBUF
            for i in range(mi):
                for j in range(nj):
                    if 'nomfma' in ABL:
                        continue
                    g("v_mfma_f32_32x32x16_bf16 %s, %s, %s, %s" % (
                        vr(acc[i][j], 16), vr(fB[b][j], 4), vr(fA[b][i], 4), vr(acc[i][j], 16)))
            step += 1
        stage_txt.append(g.L)
    g.L = save
    U0 = lcm(RSA, RSB)
    U = U0
    while (U * nks) % NBUF:
        U += U0
    g.collapse(stage_txt, U, name + "_c", S_CNT)
    g("s_barrier")
    g.nop(12)
    stamp(g, 2)
    for i in range(mi):
        for j in range(nj):
            for q in range(4):
                g("ds_write_b128 v%d, %s offset:%d" % (vXw, vr(acc[i][j] + 4 * q, 4), i * 32 * ERS + (j * 32 + q * 8) * 4))

    g.lab("%s_epi" % name)
    g.nv = common_nv
    g("s_waitcnt vmcnt(0) lgkmcnt(0)")
    g("s_barrier")
    X = [g.valloc(8, 4) for _ in range(NPASS)]
    for p in range(NPASS):
        for h in range(2):
            g("ds_read_b128 %s, v%d offset:%d" % (vr(X[p] + 4 * h, 4), E['la'], p * RPP * ERS + 16 * h))
    c.epi(g, c, E, X, NPASS, RPP)
    stamp(g, 3)
    if STAMP:
        g("s_waitcnt vmcnt(0)")
    stamp(g, 4)
    stamp_flush(g, c, 5)
    g.lab("%s_end" % name)
    g("s_endpgm")
    c.nvgpr = g.nvmax
    return g


def stats_issue(g, c, ctx, alias):
    v1 = alias
    vS = [v1, v1 + 28]
    ctx['vS'] = vS
    t = g.valloc(1)
    ctx['vSoff'] = t
    g("v_lshlrev_b32 v%d, 4, v0" % t)
    for r in range(2):
        for j in range(7):
            off = (j * 2048 + r * 1024) * 8
            g("s_mov_b32 s%d, %d" % (S_T0, off))
            g.vmem("buffer_load_dwordx4 %s, v%d, s[%d:%d], s%d offen" % (vr(vS[r] + j * 4, 4), t, SRD_E, SRD_E + 3, S_T0), ("S", 0))


def stats_finish(g, c, ctx, LDS_T0):
    vS = ctx['vS']
    t = ctx['vSoff']
    nv0 = g.nv
    H = [(r, h) for r in range(2) for h in range(2)]
    a = {k: g.valloc(1) for k in H}; b = {k: g.valloc(1) for k in H}
    dsb = g.valloc(8, 2)
    d = {k: dsb + n for n, k in enumerate(H)}; s = {k: dsb + 4 + n for n, k in enumerate(H)}
    o = [dsb, dsb + 4]
    c128 = g.valloc(1)
    g("v_mov_b32 v%d, 0x%x" % (c128, f2u(128.0)))
    g("v_add_u32 v%d, %d, v%d" % (t, LDS_T0, t))
    g.wait_vm(("S", 0))
    def M(j, k): return vS[k[0]] + 4 * j + 2 * k[1]
    def Q(j, k): return vS[k[0]] + 4 * j + 2 * k[1] + 1
    for k in H:
        g("v_add_f32 v%d, v%d, v%d" % (a[k], M(0, k), M(1, k)))
        g("v_add_f32 v%d, v%d, v%d" % (b[k], Q(0, k), Q(1, k)))
    for j in range(2, 7):
        for k in H:
            g("v_add_f32 v%d, v%d, v%d" % (a[k], a[k], M(j, k)))
            g("v_add_f32 v%d, v%d, v%d" % (b[k], b[k], Q(j, k)))
    for k in H:
        g("v_mul_f32 v%d, 0x%x, v%d" % (a[k], f2u(1.0 / 7.0), a[k]))
        g("v_mov_b32 v%d, 0" % s[k])
    for j in range(7):
        for k in H:
            g("v_sub_f32 v%d, v%d, v%d" % (d[k], M(j, k), a[k]))
        for k in H:
            g("v_fmac_f32 v%d, v%d, v%d" % (s[k], d[k], d[k]))
    for k in H:
        g("v_fmac_f32 v%d, v%d, v%d" % (b[k], s[k], c128))
    for k in H:
        g("v_mul_f32 v%d, 0x%x, v%d" % (b[k], f2u(1.0 / 896.0), b[k]))
    for k in H:
        g("v_cvt_pk_bf16_f32 v%d, v%d, v%d" % (d[k], a[k], b[k]))
    for k in H:
        g("v_lshlrev_b32 v%d, 16, v%d" % (a[k], d[k]))
        g("v_and_b32 v%d, 0xffff0000, v%d" % (b[k], d[k]))
    for k in H:
        g("v_add_f32 v%d, 0x%x, v%d" % (b[k], f2u(1e-5), b[k]))
    for k in H:
        g("v_cvt_pk_bf16_f32 v%d, v%d, v%d" % (b[k], b[k], b[k]))
    for k in H:
        g("v_lshlrev_b32 v%d, 16, v%d" % (b[k], b[k]))
    for k in H:
        g("v_sqrt_f32 v%d, v%d" % (b[k], b[k]))
    for k in H:
        g("v_cvt_pk_bf16_f32 v%d, v%d, v%d" % (b[k], b[k], b[k]))
    for k in H:
        g("v_lshlrev_b32 v%d, 16, v%d" % (b[k], b[k]))
    for k in H:
        g("v_rcp_f32 v%d, v%d" % (o[k[0]] + 2 * k[1], b[k]))
    for k in H:
        g("v_mul_f32 v%d, v%d, v%d" % (o[k[0]] + 2 * k[1] + 1, a[k], o[k[0]] + 2 * k[1]))
    for k in H:
        g("v_sub_f32 v%d, 0, v%d" % (o[k[0]] + 2 * k[1] + 1, o[k[0]] + 2 * k[1] + 1))
    for r in range(2):
        g("ds_write_b128 v%d, %s offset:%d" % (t, vr(o[r], 4), r * 1024 * 8))
    g("s_waitcnt lgkmcnt(0)")
    g("s_barrier")
    g.nv = nv0


def unpack8(g, dst, src):
    for d in range(4):
        g("v_lshlrev_b32 v%d, 16, v%d" % (dst + 2 * d, src + d))
        g("v_and_b32 v%d, 0xffff0000, v%d" % (dst + 2 * d + 1, src + d))


def pack8(g, dst, src):
    for d in range(4):
        g("v_cvt_pk_bf16_f32 v%d, v%d, v%d" % (dst + d, src + 2 * d, src + 2 * d + 1))


def store_pass(g, c, E, P, p, RPP):
    g("s_mov_b32 s%d, %d" % (S_T0, p * RPP * c.ldc))
    g.vmem("buffer_store_dwordx4 %s, v%d, s[%d:%d], s%d offen" % (vr(P, 4), E['co'], SRD_C, SRD_C + 3, S_T0), ("ST", 0))


def regs_none(g, c, E, NPASS):
    pass


def pre_none(g, c, E, NPASS, RPP, T):
    pass


def dpp_sum16(g, dst, tmp):
    for pat in ("quad_perm:[1,0,3,2]", "quad_perm:[2,3,0,1]", "row_half_mirror", "row_mirror"):
        g("s_nop 1")
        g("v_add_f32_dpp v%d, v%d, v%d %s row_mask:0xf bank_mask:0xf" % (dst, dst, dst, pat))


def regs_k1(g, c, E, NPASS):
    E['sa'] = g.valloc(1)


def pre_k1(g, c, E, NPASS, RPP, T):
    t0, t1, t2, t3 = T
    g("s_sub_u32 s%d, s%d, 7" % (S_T0, S_TN))
    g("s_lshl_b32 s%d, s%d, 11" % (S_T0, S_T0))
    g("v_add_u32 v%d, s%d, v%d" % (t2, S_T0, t1))
    g("v_lshlrev_b32 v%d, 3, v%d" % (E['sa'], t2))


def epi_k1(g, c, E, X, NPASS, RPP):
    K1c = g.valloc(2, 2); K2c = g.valloc(2, 2)
    k1 = -2.0 * 0.7978845608028654 * 1.4426950408889634
    k2 = k1 * 0.044715
    for h in range(2):
        g("v_mov_b32 v%d, 0x%x" % (K1c + h, f2u(k1)))
        g("v_mov_b32 v%d, 0x%x" % (K2c + h, f2u(k2)))
    T = [g.valloc(8, 2) for _ in range(2)]
    P = [g.valloc(4, 4) for _ in range(NPASS)]
    g("s_waitcnt lgkmcnt(0)")
    for p0 in range(0, NPASS, 2):
        ps = [p0, p0 + 1]
        for p in ps:
            pack8(g, P[p], X[p])
        for p in ps:
            unpack8(g, X[p], P[p])
        for p in ps:
            for d in range(4):
                g("v_pk_mul_f32 %s, %s, %s" % (vr(T[p & 1] + 2 * d, 2), vr(X[p] + 2 * d, 2), vr(X[p] + 2 * d, 2)))
        for p in ps:
            for d in range(4):
                g("v_pk_fma_f32 %s, %s, %s, %s" % (vr(T[p & 1] + 2 * d, 2), vr(T[p & 1] + 2 * d, 2), vr(K2c, 2), vr(K1c, 2)))
        for p in ps:
            for d in range(4):
                g("v_pk_mul_f32 %s, %s, %s" % (vr(T[p & 1] + 2 * d, 2), vr(T[p & 1] + 2 * d, 2), vr(X[p] + 2 * d, 2)))
        for p in ps:
            for r in range(8):
                g("v_exp_f32 v%d, v%d" % (T[p & 1] + r, T[p & 1] + r))
        for p in ps:
            for r in range(8):
                g("v_add_f32 v%d, 1.0, v%d" % (T[p & 1] + r, T[p & 1] + r))
        for p in ps:
            for r in range(8):
                g("v_rcp_f32 v%d, v%d" % (T[p & 1] + r, T[p & 1] + r))
        for p in ps:
            for d in range(4):
                g("v_pk_mul_f32 %s, %s, %s" % (vr(T[p & 1] + 2 * d, 2), vr(T[p & 1] + 2 * d, 2), vr(X[p] + 2 * d, 2)))
        for p in ps:
            pack8(g, P[p], T[p & 1])
        for p in ps:
            store_pass(g, c, E, P[p], p, RPP)
    g("s_cmp_lt_u32 s%d, 7" % S_TN)
    g("s_cbranch_scc1 %s_nostats" % c.name)
    for p in range(NPASS):
        unpack8(g, X[p], P[p])
    S = [g.valloc(2, 2) for _ in range(NPASS)]
    MN = [g.valloc(2, 2) for _ in range(NPASS)]
    O = [g.valloc(2, 2) for _ in range(NPASS)]
    for p in range(NPASS):
        g("v_pk_add_f32 %s, %s, %s" % (vr(S[p], 2), vr(X[p], 2), vr(X[p] + 2, 2)))
    for d in range(2, 4):
        for p in range(NPASS):
            g("v_pk_add_f32 %s, %s, %s" % (vr(S[p], 2), vr(S[p], 2), vr(X[p] + 2 * d, 2)))
    for p in range(NPASS):
        g("v_add_f32 v%d, v%d, v%d" % (O[p], S[p], S[p] + 1))
    for pat in ("quad_perm:[1,0,3,2]", "quad_perm:[2,3,0,1]", "row_half_mirror", "row_mirror"):
        g("s_nop 1")
        for p in range(NPASS):
            g("v_add_f32_dpp v%d, v%d, v%d %s row_mask:0xf bank_mask:0xf" % (O[p], O[p], O[p], pat))
    for p in range(NPASS):
        g("v_mul_f32 v%d, 0x%x, v%d" % (O[p], f2u(1.0 / 128.0), O[p]))
    for p in range(NPASS):
        g("v_sub_f32 v%d, 0, v%d" % (MN[p], O[p]))
        g("v_sub_f32 v%d, 0, v%d" % (MN[p] + 1, O[p]))
    for d in range(4):
        for p in range(NPASS):
            g("v_pk_add_f32 %s, %s, %s" % (vr(X[p] + 2 * d, 2), vr(X[p] + 2 * d, 2), vr(MN[p], 2)))
    for p in range(NPASS):
        g("v_pk_mul_f32 %s, %s, %s" % (vr(S[p], 2), vr(X[p], 2), vr(X[p], 2)))
    for d in range(1, 4):
        for p in range(NPASS):
            g("v_pk_fma_f32 %s, %s, %s, %s" % (vr(S[p], 2), vr(X[p] + 2 * d, 2), vr(X[p] + 2 * d, 2), vr(S[p], 2)))
    for p in range(NPASS):
        g("v_add_f32 v%d, v%d, v%d" % (O[p] + 1, S[p], S[p] + 1))
    for pat in ("quad_perm:[1,0,3,2]", "quad_perm:[2,3,0,1]", "row_half_mirror", "row_mirror"):
        g("s_nop 1")
        for p in range(NPASS):
            g("v_add_f32_dpp v%d, v%d, v%d %s row_mask:0xf bank_mask:0xf" % (O[p] + 1, O[p] + 1, O[p] + 1, pat))
    t = g.valloc(1)
    g("v_and_b32 v%d, 15, v0" % t)
    g("v_cmp_eq_u32 vcc, 0, v%d" % t)
    g("s_and_saveexec_b64 s[60:61], vcc")
    for p in range(NPASS):
        g.vmem("buffer_store_dwordx2 %s, v%d, s[%d:%d], 0 offen offset:%d" % (vr(O[p], 2), E['sa'], SRD_E, SRD_E + 3, p * RPP * 8), ("ST", 0))
    g("s_mov_b64 exec, s[60:61]")
    g.lab("%s_nostats" % c.name)


def regs_k2(g, c, E, NPASS):
    E['z'] = [g.valloc(4, 2) for _ in range(NPASS)]
    E['b'] = [g.valloc(1) for _ in range(NPASS)]


def pre_k2(g, c, E, NPASS, RPP, T):
    t0, t1, t2, t3 = T
    g("s_mov_b32 s%d, %d" % (S_T1, F_ * 2))
    g("v_mul_lo_u32 v%d, v%d, s%d" % (t2, t1, S_T1))
    g("v_lshl_add_u32 v%d, v%d, 4, v%d" % (t2, t0, t2))
    g("s_mul_i32 s%d, s%d, %d" % (S_T0, S_TN, c.BN * 2))
    g("v_add_u32 v%d, s%d, v%d" % (t2, S_T0, t2))
    for p in range(NPASS):
        g("s_mov_b32 s%d, %d" % (S_T0, p * RPP * F_ * 2))
        g.vmem("buffer_load_dwordx4 %s, v%d, s[%d:%d], s%d offen" % (vr(E['z'][p], 4), t2, SRD_D, SRD_D + 3, S_T0), ("Z", 0))
    mk_srd(g, SRD_F, 'b_sp', 0, S_ * 2)
    g("v_lshlrev_b32 v%d, 1, v%d" % (t3, t1))
    for p in range(NPASS):
        g.vmem("buffer_load_ushort v%d, v%d, s[%d:%d], 0 offen offset:%d" % (E['b'][p], t3, SRD_F, SRD_F + 3, p * RPP * 2), ("Z", 0))


def epi_k2(g, c, E, X, NPASS, RPP):
    Y = [g.valloc(8, 2) for _ in range(NPASS)]
    B2 = [g.valloc(2, 2) for _ in range(NPASS)]
    P = [g.valloc(4, 4) for _ in range(NPASS)]
    PS = range(NPASS)
    for p in PS:
        g("v_lshlrev_b32 v%d, 16, v%d" % (B2[p], E['b'][p]))
        g("v_lshlrev_b32 v%d, 16, v%d" % (B2[p] + 1, E['b'][p]))
        unpack8(g, Y[p], E['z'][p])
    g("s_waitcnt lgkmcnt(0)")
    for p in PS:
        pack8(g, P[p], X[p])
    for p in PS:
        unpack8(g, X[p], P[p])
    for p in PS:
        for d in range(4):
            g("v_pk_add_f32 %s, %s, %s" % (vr(X[p] + 2 * d, 2), vr(X[p] + 2 * d, 2), vr(B2[p], 2)))
    for p in PS:
        pack8(g, P[p], X[p])
    for p in PS:
        unpack8(g, X[p], P[p])
    for p in PS:
        for d in range(4):
            g("v_pk_mul_f32 %s, %s, %s" % (vr(X[p] + 2 * d, 2), vr(X[p] + 2 * d, 2), vr(Y[p] + 2 * d, 2)))
    for p in PS:
        pack8(g, P[p], X[p])
    for p in PS:
        store_pass(g, c, E, P[p], p, RPP)


def epi_k3(g, c, E, X, NPASS, RPP):
    P = [g.valloc(4, 4) for _ in range(NPASS)]
    g("s_waitcnt lgkmcnt(0)")
    for p in range(NPASS):
        pack8(g, P[p], X[p])
    for p in range(NPASS):
        store_pass(g, c, E, P[p], p, RPP)


def main():
    k1 = Cfg()
    k1.name = "gemm1_kernel"; k1.K = D_; k1.BM = 128; k1.BN = 128; k1.BK = 64; k1.WM = 64; k1.WN = 64
    k1.mode = 'dma'; k1.slots = 5; k1.PD = 2; k1.lda = D_ * 2; k1.ldb = F_ * 2; k1.ldc = F_ * 2; k1.TM = 16; k1.TN = 14; k1.ln = False
    k1.a_buf = ('x', 0, S_ * D_ * 2); k1.b_buf = ('w_in', 0, D_ * F_ * 2); k1.c_buf = ('ws', WS_Z, S_ * F_ * 2)
    k1.e_buf = ('ws', WS_ST, 7 * 2048 * 8)
    k1.epi_regs = regs_k1; k1.epi_pre = pre_k1; k1.epi = epi_k1

    k2 = Cfg()
    k2.name = "gemm2_kernel"; k2.K = S_; k2.BM = 128; k2.BN = 64; k2.BK = 64; k2.WM = 32; k2.WN = 64
    k2.slots = 4; k2.nload = 4; k2.DA = int(os.environ.get('DA', 6)); k2.DB = int(os.environ.get('DB', 6)); k2.PD = 3; k2.lda = S_ * 2; k2.ldb = F_ * 2; k2.ldc = FH * 2; k2.TM = 16; k2.TN = 14; k2.ln = True
    k2.b_col0 = FH
    k2.a_buf = ('w_sp', 0, S_ * S_ * 2); k2.b_buf = ('ws', WS_Z, S_ * F_ * 2); k2.c_buf = ('ws', WS_H, S_ * FH * 2)
    k2.d_buf = ('ws', WS_Z, S_ * F_ * 2); k2.e_buf = ('ws', WS_ST, 7 * 2048 * 8)
    k2.epi_regs = regs_k2; k2.epi_pre = pre_k2; k2.epi = epi_k2

    k3 = Cfg()
    k3.name = "gemm3_kernel"; k3.K = FH; k3.BM = 64; k3.BN = 64; k3.BK = 128; k3.WM = 32; k3.WN = 32
    k3.mode = 'dma'; k3.slots = 5; k3.PD = 5; k3.lda = FH * 2; k3.ldb = D_ * 2; k3.ldc = D_ * 2; k3.TM = 32; k3.TN = 7; k3.ln = False
    k3.a_buf = ('ws', WS_H, S_ * FH * 2); k3.b_buf = ('w_out', 0, FH * D_ * 2); k3.c_buf = ('out', 0, S_ * D_ * 2)
    k3.epi_regs = regs_none; k3.epi_pre = pre_none; k3.epi = epi_k3

    ks = [k1, k2, k3]
    for i, k in enumerate(ks):
        k.kid = i
    gs = [gen_kernel(k) for k in ks]
    out = []
    hdr = open("standalone__mixer_gmlp__prompt.s.ref").read().splitlines()
    for ln in hdr:
        if ln.startswith(";") and "@launch" not in ln:
            out.append(ln)
    for k in ks:
        out.append("; @launch kernel=%s grid=(%d,1,1) block=(%d,1,1) lds=%d" % (k.name, k.TM * k.TN, 512 + 64 * (k.nload if k.ln else 0), k.lds))
    out.append('.amdgcn_target "amdgcn-amd-amdhsa--gfx950"')
    out.append(".text")
    for k, g in zip(ks, gs):
        out.append(".globl %s" % k.name)
        out.append(".p2align 8")
        out.append(".type %s,@function" % k.name)
        out += g.L
    out.append('.section .rodata,"a"')
    for k in ks:
        nv = max(k.nvgpr, 8)
        assert nv <= 256, (k.name, nv)
        ao = (nv + 3) // 4 * 4
        out.append(".p2align 6")
        out.append(".amdhsa_kernel %s" % k.name)
        out.append("  .amdhsa_next_free_vgpr %d" % nv)
        out.append("  .amdhsa_next_free_sgpr 96")
        out.append("  .amdhsa_accum_offset %d" % ao)
        out.append("  .amdhsa_group_segment_fixed_size 0")
        out.append("  .amdhsa_kernarg_size 64")
        out.append("  .amdhsa_user_sgpr_count 2")
        out.append("  .amdhsa_user_sgpr_kernarg_segment_ptr 1")
        out.append("  .amdhsa_system_sgpr_workgroup_id_x 1")
        out.append("  .amdhsa_float_denorm_mode_32 3")
        out.append(".end_amdhsa_kernel")
        sys.stderr.write("%s: vgpr=%d lds=%d\n" % (k.name, k.nvgpr, k.lds))
    open(sys.argv[1] if len(sys.argv) > 1 else "standalone__mixer_gmlp__prompt.s", "w").write("\n".join(out) + "\n")


main()
```

```python
import sys, struct, math, os
STAMP = os.environ.get('STAMP', '')
ABL = os.environ.get('ABL', '')

S_, D_, F_, FH = 2048, 448, 1792, 896
WS_Z = 0
WS_ST = 0x800000
WS_H = 0x900000


def f2u(x):
    return struct.unpack('<I', struct.pack('<f', x))[0]


def log2(x):
    l = x.bit_length() - 1
    assert 1 << l == x, x
    return l


def lcm(a, b):
    return a * b // math.gcd(a, b)


class G:
    def __init__(self):
        self.L = []
        self.vm = []
        self.nv = 0
        self.nvmax = 0

    def __call__(self, s):
        self.L.append("  " + s)

    def lab(self, s):
        self.L.append(s + ":")

    def nop(self, n):
        while n > 0:
            k = min(n, 16)
            self("s_nop %d" % (k - 1))
            n -= k

    def vmem(self, s, tag):
        self(s)
        self.vm.append(tag)

    def wait_vm(self, tag, extra=""):
        idx = -1
        for i, t in enumerate(self.vm):
            if t == tag:
                idx = i
        if idx < 0:
            if extra:
                self("s_waitcnt " + extra)
            return
        n = len(self.vm) - 1 - idx
        assert n <= 63
        self("s_waitcnt vmcnt(%d) %s" % (n, extra))
        self.vm = self.vm[idx + 1:]

    def valloc(self, n, align=1):
        self.nv = (self.nv + align - 1) // align * align
        r = self.nv
        self.nv += n
        self.nvmax = max(self.nvmax, self.nv)
        return r

    def collapse(self, stage_txt, U, name, cnt_sgpr):
        nst = len(stage_txt)
        grp = [sum(stage_txt[s0:s0 + U], []) for s0 in range(0, nst, U)]
        i = 0
        nloop = 0
        while i < len(grp):
            j = i
            while j + 1 < len(grp) and grp[j + 1] == grp[i]:
                j += 1
            cnt = j - i + 1
            if cnt >= 2:
                lab = "%s_loop%d" % (name, nloop)
                nloop += 1
                self("s_mov_b32 s%d, %d" % (cnt_sgpr, cnt))
                self.lab(lab)
                self.L += grp[i]
                self("s_sub_u32 s%d, s%d, 1" % (cnt_sgpr, cnt_sgpr))
                self("s_cmp_lg_u32 s%d, 0" % cnt_sgpr)
                self("s_cbranch_scc1 %s" % lab)
            else:
                self.L += grp[i]
            i = j + 1


def vr(b, n=1):
    return "v%d" % b if n == 1 else "v[%d:%d]" % (b, b + n - 1)


class Cfg:
    pass


SRD_A, SRD_B, SRD_C, SRD_D, SRD_E, SRD_F = 8, 12, 16, 20, 24, 28
S_TM, S_TN, S_W, S_SOA, S_SOB = 48, 49, 50, 51, 52
S_M0A, S_M0B, S_CNT, S_T0, S_T1, S_T2, S_T3 = 53, 54, 55, 56, 57, 58, 59
PTR = dict(x=32, w_in=34, w_sp=36, b_sp=38, w_out=40, out=42, dbg=44, ws=46)


def mk_srd(g, srd, ptr, off, nbytes):
    p = PTR[ptr]
    if off:
        g("s_add_u32 s%d, s%d, 0x%x" % (srd, p, off))
        g("s_addc_u32 s%d, s%d, 0" % (srd + 1, p + 1))
    else:
        g("s_mov_b32 s%d, s%d" % (srd, p))
        g("s_mov_b32 s%d, s%d" % (srd + 1, p + 1))
    g("s_and_b32 s%d, s%d, 0xffff" % (srd + 1, srd + 1))
    g("s_mov_b32 s%d, 0x%x" % (srd + 2, nbytes))
    g("s_mov_b32 s%d, 0x20000" % (srd + 3))


def stamp(g, k):
    if STAMP:
        g("s_memrealtime s[%d:%d]" % (64 + 2 * k, 65 + 2 * k))
        g("s_waitcnt lgkmcnt(0)")


def stamp_flush(g, c, n):
    if not STAMP:
        return
    g("s_and_b32 s%d, s%d, 3" % (S_T0, S_T3))
    g("s_cmp_lg_u32 s%d, 0" % S_T0)
    g("s_cbranch_scc1 %s_nostamp" % (c.name))
    mk_srd(g, 88, 'ws', 0x2000000 + c.kid * 0x10000, 0x10000)
    g("s_lshl_b32 s%d, s2, 7" % S_T0)
    g("s_lshl_b32 s%d, s%d, 4" % (S_T1, S_T3))
    g("s_add_u32 s%d, s%d, s%d" % (S_T0, S_T0, S_T1))
    g("v_mov_b32 v1, s%d" % S_T0)
    for k in range(n):
        g("v_mov_b32 v2, s%d" % (64 + 2 * k))
        g("buffer_store_dword v2, v1, s[88:91], 0 offen offset:%d" % (4 * k))
        g("s_nop 1")
    g.lab("%s_nostamp" % (c.name))


def interleave(g, emit_main, slots):
    save = g.L
    g.L = []
    emit_main()
    main = g.L
    g.L = save
    n = len(slots)
    if n == 0:
        g.L += main
        return
    step = max(1, len(main) // n)
    pos = 0
    for k, sfn in enumerate(slots):
        sfn()
        end = len(main) if k == n - 1 else min(len(main), pos + step)
        g.L += main[pos:end]
        pos = end


def gen_kernel(c):
    g = G()
    name = c.name
    NP = 4
    RA = c.BK * 2
    RB = c.BN * 2
    PPA, PPB = RA // 16, RB // 16
    ASZ, BSZ = c.BM * RA, c.BK * RB
    nA = ASZ // 1024 // NP
    nB = BSZ // 1024 // NP
    mi, nj, nks = c.WM // 32, c.WN // 32, c.BK // 16
    wpn = c.BN // c.WN
    nst = c.K // c.BK
    RSA = c.slots
    RSB = 4 if c.ln else c.slots
    LDS_A0 = 0
    LDS_B0 = RSA * ASZ
    LDS_T0 = LDS_B0 + RSB * BSZ
    lds_total = LDS_T0 + (2048 * 8 if c.ln else 0)
    ERS = c.BN * 4 + 16
    lds_total = max(lds_total, c.BM * ERS)
    assert lds_total <= 160 * 1024, lds_total
    c.lds = lds_total
    CPR = c.BN // 8
    RPP = 512 // CPR
    NPASS = c.BM // RPP

    g.lab(name)
    if getattr(c, 'prefetch', False):
        g("s_cmp_ge_u32 s2, %d" % (c.TM * c.TN + 32))
        g("s_cbranch_scc1 %s_end" % name)
        g("s_cmp_ge_u32 s2, %d" % (c.TM * c.TN))
        g("s_cbranch_scc1 %s_pf" % name)
    else:
        g("s_cmp_ge_u32 s2, %d" % (c.TM * c.TN))
        g("s_cbranch_scc1 %s_end" % name)
    stamp(g, 0)
    g("s_load_dwordx16 s[32:47], s[0:1], 0")
    g("s_and_b32 s%d, s2, 7" % S_T0)
    g("s_lshr_b32 s%d, s2, 3" % S_T1)
    g("s_and_b32 s%d, s%d, 3" % (S_TM, S_T1))
    g("s_lshr_b32 s%d, s%d, 2" % (S_TN, S_T1))
    if c.TN == 14:
        g("s_lshr_b32 s%d, s%d, 1" % (S_T2, S_T0))
        g("s_lshl_b32 s%d, s%d, 2" % (S_T2, S_T2))
        g("s_add_u32 s%d, s%d, s%d" % (S_TM, S_TM, S_T2))
        g("s_and_b32 s%d, s%d, 1" % (S_T2, S_T0))
        g("s_mul_i32 s%d, s%d, 7" % (S_T2, S_T2))
        g("s_add_u32 s%d, s%d, s%d" % (S_TN, S_TN, S_T2))
    else:
        assert c.TN == 7
        g("s_lshl_b32 s%d, s%d, 2" % (S_T2, S_T0))
        g("s_add_u32 s%d, s%d, s%d" % (S_TM, S_TM, S_T2))
    g.nv = 1
    vL = g.valloc(1)
    vW = g.valloc(1)
    t0 = g.valloc(1); t1 = g.valloc(1); t2 = g.valloc(1); t3 = g.valloc(1)
    g("v_and_b32 v%d, 63, v0" % vL)
    g("v_lshrrev_b32 v%d, 6, v0" % vW)
    g("s_nop 0")
    g("v_readfirstlane_b32 s%d, v%d" % (S_W, vW))
    g("v_and_b32 v%d, 3, v%d" % (vW, vW))
    E = {}
    E['row'] = g.valloc(1)
    E['la'] = g.valloc(1)
    E['co'] = g.valloc(1)
    c.epi_regs(g, c, E, NPASS)
    g("s_mov_b32 s%d, s%d" % (S_T3, S_W))
    g("s_cmp_lt_u32 s%d, 4" % S_W)
    g("s_cbranch_scc1 %s_cons" % name)
    common_nv = g.nv

    def epi_setup():
        g("v_lshrrev_b32 v%d, %d, v0" % (E['row'], log2(CPR)))
        g("v_and_b32 v%d, %d, v0" % (t0, CPR - 1))
        g("v_mul_u32_u24 v%d, %d, v%d" % (t1, ERS, E['row']))
        g("v_lshl_add_u32 v%d, v%d, 5, v%d" % (E['la'], t0, t1))
        g("s_mul_i32 s%d, s%d, %d" % (S_T0, S_TM, c.BM))
        g("v_add_u32 v%d, s%d, v%d" % (t1, S_T0, E['row']))
        g("s_mov_b32 s%d, %d" % (S_T1, c.ldc))
        g("v_mul_lo_u32 v%d, v%d, s%d" % (t2, t1, S_T1))
        g("s_mul_i32 s%d, s%d, %d" % (S_T0, S_TN, c.BN * 2))
        g("v_lshl_add_u32 v%d, v%d, 4, v%d" % (t3, t0, t2))
        g("v_add_u32 v%d, s%d, v%d" % (E['co'], S_T0, t3))
        c.epi_pre(g, c, E, NPASS, RPP, (t0, t1, t2, t3))

    split = c.ln
    NL = c.nload if split else 0
    rpcA, rpcB = 1024 // RA, 1024 // RB

    def a_offsets(nw, vWx):
        n = ASZ // 1024 // nw
        vAs = [g.valloc(1) for _ in range(n)]
        g("s_mul_i32 s%d, s%d, %d" % (S_T0, S_TM, c.BM * c.lda))
        g("s_mov_b32 s%d, %d" % (S_T1, c.lda))
        for q in range(n):
            g("v_lshrrev_b32 v%d, %d, v%d" % (t0, log2(PPA), vL))
            g("v_mul_u32_u24 v%d, %d, v%d" % (t1, n * rpcA, vWx))
            g("v_add3_u32 v%d, v%d, v%d, %d" % (t0, t0, t1, q * rpcA))
            if PPA == 8:
                g("v_bfe_u32 v%d, v%d, 1, 3" % (t1, t0))
            else:
                assert PPA == 16
                g("v_and_b32 v%d, 15, v%d" % (t1, t0))
            g("v_and_b32 v%d, %d, v%d" % (t2, PPA - 1, vL))
            g("v_xor_b32 v%d, v%d, v%d" % (t2, t2, t1))
            g("v_lshlrev_b32 v%d, 4, v%d" % (t2, t2))
            g("v_mul_lo_u32 v%d, v%d, s%d" % (t0, t0, S_T1))
            g("v_add3_u32 v%d, v%d, v%d, s%d" % (vAs[q], t0, t2, S_T0))
        return vAs

    def a_dma(vAs, st):
        sl = st % RSA
        for q in range(len(vAs)):
            g("s_add_u32 m0, s%d, %d" % (S_M0A, LDS_A0 + sl * ASZ + q * 1024))
            g("s_nop 0")
            g.vmem("buffer_load_dwordx4 v%d, s[%d:%d], s%d offen lds" % (vAs[q], SRD_A, SRD_A + 3, S_SOA), st)
        g("s_add_u32 s%d, s%d, %d" % (S_SOA, S_SOA, c.BK * 2))

    if split:
        g("s_cmp_lt_u32 s%d, 8" % S_W)
        g("s_cbranch_scc1 %s_bw" % name)
        if c.amode == 'dma':
            g("s_sub_u32 s%d, s%d, 8" % (S_W, S_W))
            vAs = a_offsets(NL, vW)
            g("s_mul_i32 s%d, s%d, %d" % (S_M0A, S_W, len(vAs) * 1024))
            g("s_mov_b32 s%d, 0" % S_SOA)
            g("s_waitcnt lgkmcnt(0)")
            mk_srd(g, SRD_A, *c.a_buf)
            for st in range(2):
                a_dma(vAs, st)
            g("s_barrier")
            for st in range(2, min(RSA, nst)):
                a_dma(vAs, st)
            g.wait_vm(1)
            save = g.L
            stage_txt = []
            for b in range(nst):
                g.L = []
                g("s_barrier")
                if b >= 1 and b - 1 + RSA < nst:
                    a_dma(vAs, b - 1 + RSA)
                if b + 2 < nst:
                    g.wait_vm(b + 2)
                stage_txt.append(g.L)
            g.L = save
            g.collapse(stage_txt, RSA, name + "_l", S_CNT)
            g("s_endpgm")
            g.vm = []
        else:
            vAs = a_offsets(NL, vW)
            nAl = len(vAs)
            DA = c.DA
            vAw = g.valloc(1)
            g("v_mul_u32_u24 v%d, %d, v%d" % (t0, nAl * 1024, vW))
            g("v_lshl_add_u32 v%d, v%d, 4, v%d" % (vAw, vL, t0))
            vAr = [[g.valloc(4, 2) for _ in range(nAl)] for _ in range(DA)]
            g("s_mov_b32 s%d, 0" % S_SOA)
            g("s_waitcnt lgkmcnt(0)")
            mk_srd(g, SRD_A, *c.a_buf)

            def a_slots(st):
                rs = st % DA
                out = []
                if 'noAl' in ABL:
                    return out
                for q in range(nAl):
                    def f(q=q):
                        g.vmem("buffer_load_dwordx4 %s, v%d, s[%d:%d], s%d offen" % (vr(vAr[rs][q], 4), vAs[q], SRD_A, SRD_A + 3, S_SOA), st)
                        if q == nAl - 1:
                            g("s_add_u32 s%d, s%d, %d" % (S_SOA, S_SOA, c.BK * 2))
                    out.append(f)
                return out

            def a_write(st):
                if 'noAw' in ABL:
                    return
                for q in range(nAl):
                    g("ds_write_b128 v%d, %s offset:%d" % (vAw, vr(vAr[st % DA][q], 4), (st % RSA) * ASZ + q * 1024))

            for st in range(2):
                for f in a_slots(st):
                    f()
            g("s_barrier")
            for st in range(2, DA):
                for f in a_slots(st):
                    f()
            g.wait_vm(0)
            a_write(0)
            g.wait_vm(1)
            a_write(1)
            g("s_waitcnt lgkmcnt(0)")
            g.wait_vm(2)
            interleave(g, lambda: a_write(2), a_slots(DA) + a_slots(DA + 1))
            save = g.L
            stage_txt = []
            for b in range(nst):
                g.L = []
                g("s_barrier")
                if b + 3 < nst:
                    g.wait_vm(b + 3)
                    interleave(g, lambda: a_write(b + 3), a_slots(b + 2 + DA) if b + 2 + DA < nst else [])
                    g("s_waitcnt lgkmcnt(%d)" % (0 if 'noAw' in ABL else nAl))
                elif b + 2 < nst:
                    g("s_waitcnt lgkmcnt(0)")
                stage_txt.append(g.L)
            g.L = save
            g.collapse(stage_txt, lcm(RSA, DA), name + "_l", S_CNT)
            g("s_endpgm")
            g.vm = []
        g.lab("%s_bw" % name)
        g.nv = common_nv
        if os.environ.get('BPRIO'):
            g("s_setprio %s" % os.environ['BPRIO'])

    g("s_sub_u32 s%d, s%d, 4" % (S_W, S_W))
    if not split:
        vAs = a_offsets(NP, vW)
    vBs = [g.valloc(1) for _ in range(nB)]
    g("s_mul_i32 s%d, s%d, %d" % (S_T0, S_TN, c.BN * 2))
    if getattr(c, 'b_col0', 0):
        g("s_add_u32 s%d, s%d, %d" % (S_T0, S_T0, c.b_col0 * 2))
    g("s_mov_b32 s%d, %d" % (S_T1, c.ldb))
    vBrow = []
    for q in range(nB):
        g("v_lshrrev_b32 v%d, %d, v%d" % (t0, log2(PPB), vL))
        g("v_mul_u32_u24 v%d, %d, v%d" % (t1, nB * rpcB, vW))
        g("v_add3_u32 v%d, v%d, v%d, %d" % (t0, t0, t1, q * rpcB))
        if c.ln:
            r = g.valloc(1)
            vBrow.append(r)
            g("v_lshlrev_b32 v%d, 3, v%d" % (r, t0))
            g("v_add_u32 v%d, %d, v%d" % (r, LDS_T0, r))
        if PPB == 8:
            g("v_bfe_u32 v%d, v%d, 1, 1" % (t1, t0))
        else:
            assert PPB == 16
            g("v_and_b32 v%d, 3, v%d" % (t1, t0))
        g("v_lshlrev_b32 v%d, 2, v%d" % (t1, t1))
        g("v_and_b32 v%d, %d, v%d" % (t2, PPB - 1, vL))
        g("v_xor_b32 v%d, v%d, v%d" % (t2, t2, t1))
        g("v_lshlrev_b32 v%d, 4, v%d" % (t2, t2))
        g("v_mul_lo_u32 v%d, v%d, s%d" % (t0, t0, S_T1))
        g("v_add3_u32 v%d, v%d, v%d, s%d" % (vBs[q], t0, t2, S_T0))
    if split:
        DB = c.DB
        vBw = g.valloc(1)
        g("v_mul_u32_u24 v%d, %d, v%d" % (t0, nB * 1024, vW))
        g("v_lshl_add_u32 v%d, v%d, 4, v%d" % (vBw, vL, t0))
        g("v_add_u32 v%d, %d, v%d" % (vBw, LDS_B0, vBw))
        vBr = [[g.valloc(4, 2) for _ in range(nB)] for _ in range(DB)]
        xblk = g.valloc(56, 2)
        vTab = [[xblk + 2 * (h * nB + q) for q in range(nB)] for h in range(2)]
        vX = [xblk + 4 * nB + 8 * q for q in range(nB)]
        vO = [[xblk + 12 * nB + 4 * (h * nB + q) for q in range(nB)] for h in range(2)]
    else:
        g("s_mul_i32 s%d, s%d, %d" % (S_M0A, S_W, len(vAs) * 1024))
        g("s_mul_i32 s%d, s%d, %d" % (S_M0B, S_W, nB * 1024))
        g("s_add_u32 s%d, s%d, %d" % (S_M0B, S_M0B, LDS_B0))
        g("s_mov_b32 s%d, 0" % S_SOA)
    g("s_mov_b32 s%d, 0" % S_SOB)
    g("s_waitcnt lgkmcnt(0)")
    if not split:
        mk_srd(g, SRD_A, *c.a_buf)
    mk_srd(g, SRD_B, *c.b_buf)
    if hasattr(c, 'e_buf'):
        mk_srd(g, SRD_E, *c.e_buf)
    pctx = {}

    def b_dma(st):
        sl = st % RSB
        for q in range(nB):
            g("s_add_u32 m0, s%d, %d" % (S_M0B, sl * BSZ + q * 1024))
            g("s_nop 0")
            g.vmem("buffer_load_dwordx4 v%d, s[%d:%d], s%d offen lds" % (vBs[q], SRD_B, SRD_B + 3, S_SOB), st)
        g("s_add_u32 s%d, s%d, %d" % (S_SOB, S_SOB, c.BK * c.ldb))

    def reg_slots(st):
        rs = st % DB
        out = []
        if 'noBl' in ABL:
            return out
        for q in range(nB):
            def f(q=q):
                g.vmem("buffer_load_dwordx4 %s, v%d, s[%d:%d], s%d offen" % (vr(vBr[rs][q], 4), vBs[q], SRD_B, SRD_B + 3, S_SOB), ("B", st))
                if q == nB - 1:
                    g("s_add_u32 s%d, s%d, %d" % (S_SOB, S_SOB, c.BK * c.ldb))
            out.append(f)
        return out

    def tab_read(st):
        for q in range(nB):
            g("ds_read_b64 %s, v%d" % (vr(vTab[st & 1][q], 2), vBrow[q]))
        for q in range(nB):
            g("v_add_u32 v%d, %d, v%d" % (vBrow[q], c.BK * 8, vBrow[q]))

    def write_body(st):
        rs = st % DB
        sl = st % RSB
        if 'noBw' in ABL:
            return
        for d in range(4):
            for q in range(nB):
                src = vBr[rs][q]
                g("v_lshlrev_b32 v%d, 16, v%d" % (vX[q] + 2 * d, src + d))
                g("v_and_b32 v%d, 0xffff0000, v%d" % (vX[q] + 2 * d + 1, src + d))
        for d in range(4):
            for q in range(nB):
                T = vTab[st & 1][q]
                for h in range(2):
                    g("v_fma_f32 v%d, v%d, v%d, v%d" % (vX[q] + 2 * d + h, vX[q] + 2 * d + h, T, T + 1))
        for d in range(4):
            for q in range(nB):
                g("v_cvt_pk_bf16_f32 v%d, v%d, v%d" % (vO[st & 1][q] + d, vX[q] + 2 * d, vX[q] + 2 * d + 1))
        for q in range(nB):
            g("ds_write_b128 v%d, %s offset:%d" % (vBw, vr(vO[st & 1][q], 4), sl * BSZ + q * 1024))

    def pf_issue():
        pv = g.valloc(1)
        pd = 160
        g.nvmax = max(g.nvmax, 168)
        g("v_subrev_u32 v%d, 256, v0" % pv)
        g("v_lshlrev_b32 v%d, 4, v%d" % (pv, pv))
        mk_srd(g, SRD_D, 'w_sp', 0, S_ * S_ * 2)
        mk_srd(g, SRD_F, 'w_out', 0, FH * D_ * 2)
        g("s_lshl_b32 s%d, s2, 15" % S_T0)
        g("s_mul_i32 s%d, s2, 3136" % S_T1)
        for k in range(8):
            g.vmem("buffer_load_dwordx4 %s, v%d, s[%d:%d], s%d offen" % (vr(pd + 4 * (k & 1), 4), pv, SRD_D, SRD_D + 3, S_T0), "PF")
            g("s_add_u32 s%d, s%d, 4096" % (S_T0, S_T0))
        g.vmem("buffer_load_dwordx4 %s, v%d, s[%d:%d], s%d offen" % (vr(pd, 4), pv, SRD_F, SRD_F + 3, S_T1), "PF")

    mk_srd(g, SRD_C, *c.c_buf)
    if hasattr(c, 'd_buf'):
        mk_srd(g, SRD_D, *c.d_buf)
    if split:
        stats_issue(g, c, pctx, xblk)
        for st in range(2):
            for f in reg_slots(st):
                f()
        stats_finish(g, c, pctx, LDS_T0)
        for st in range(2, DB):
            for f in reg_slots(st):
                f()
        tab_read(0)
        tab_read(1)
        epi_setup()
        g.wait_vm(("B", 0), "lgkmcnt(0)")
        write_body(0)
        tab_read(2)
        g.wait_vm(("B", 1))
        write_body(1)
        g("s_waitcnt lgkmcnt(0)")
        tab_read(3)
        g.wait_vm(("B", 2))
        interleave(g, lambda: write_body(2), reg_slots(DB) + reg_slots(DB + 1))
    else:
        for st in range(min(RSA, nst)):
            a_dma(vAs, st)
            b_dma(st)
        epi_setup()
        g.wait_vm(1)
    stamp(g, 1)
    save = g.L
    stage_txt = []
    for b in range(nst):
        g.L = []
        g("s_barrier")
        if split:
            if b + 3 < nst:
                g.wait_vm(("B", b + 3), "lgkmcnt(%d)" % (0 if 'noBw' in ABL else nB))
                if b + 4 < nst:
                    tab_read(b + 4)
                interleave(g, lambda: write_body(b + 3), reg_slots(b + 2 + DB) if b + 2 + DB < nst else [])
                g("s_waitcnt lgkmcnt(%d)" % ((0 if 'noBw' in ABL else nB) + (nB if b + 4 < nst else 0)))
            elif b + 2 < nst:
                g("s_waitcnt lgkmcnt(0)")
        else:
            if b >= 1 and b - 1 + RSA < nst:
                a_dma(vAs, b - 1 + RSA)
                b_dma(b - 1 + RSA)
            if b + 2 < nst:
                g.wait_vm(b + 2)
            if getattr(c, 'prefetch', False) and b == nst - int(os.environ.get('PFB', 4)):
                pf_issue()
        stage_txt.append(g.L)
    g.L = save
    U = lcm(lcm(RSB, DB), 2) if split else RSA
    g.collapse(stage_txt, U, name + "_p", S_CNT)
    stamp(g, 2)
    g("s_barrier")
    g("s_branch %s_epi" % name)
    g.vm = []

    g.lab("%s_cons" % name)
    g.nv = common_nv
    if os.environ.get('CPRIO'):
        g("s_setprio %s" % os.environ['CPRIO'])
    vWm = g.valloc(1); vWn = g.valloc(1)
    g("v_lshrrev_b32 v%d, %d, v%d" % (vWm, log2(wpn), vW))
    g("v_and_b32 v%d, %d, v%d" % (vWn, wpn - 1, vW))
    PD = c.PD
    NBUF = PD + 1
    blk = g.valloc(16 * mi * nj + NBUF * 4 * (mi + nj), 4)
    acc = [[blk + 16 * (i * nj + j) for j in range(nj)] for i in range(mi)]
    fb0 = blk + 16 * mi * nj
    fA = [[fb0 + 4 * (b * mi + i) for i in range(mi)] for b in range(NBUF)]
    fB = [[fb0 + 4 * NBUF * mi + 4 * (b * nj + j) for j in range(nj)] for b in range(NBUF)]
    ectx = {}
    g("s_waitcnt lgkmcnt(0)")
    mk_srd(g, SRD_C, *c.c_buf)
    if hasattr(c, 'd_buf'):
        mk_srd(g, SRD_D, *c.d_buf)
    if hasattr(c, 'e_buf'):
        mk_srd(g, SRD_E, *c.e_buf)
    if c.ln:
        stats_issue(g, c, ectx, blk)
    epi_setup()

    vAf = g.valloc(1)
    g("v_and_b32 v%d, 31, v%d" % (t0, vL))
    g("v_mul_u32_u24 v%d, %d, v%d" % (t1, c.WM, vWm))
    g("v_add_u32 v%d, v%d, v%d" % (t0, t0, t1))
    vXw = g.valloc(1)
    g("v_mul_u32_u24 v%d, %d, v%d" % (vXw, ERS, t0))
    g("v_mul_u32_u24 v%d, %d, v%d" % (t2, c.WN * 4, vWn))
    g("v_add_u32 v%d, v%d, v%d" % (vXw, vXw, t2))
    g("v_lshrrev_b32 v%d, 5, v%d" % (t2, vL))
    g("v_lshl_add_u32 v%d, v%d, 4, v%d" % (vXw, t2, vXw))
    if PPA == 8:
        g("v_bfe_u32 v%d, v%d, 1, 3" % (t1, t0))
    else:
        g("v_and_b32 v%d, 15, v%d" % (t1, t0))
    g("v_lshrrev_b32 v%d, 5, v%d" % (t2, vL))
    g("v_xor_b32 v%d, v%d, v%d" % (t2, t2, t1))
    g("v_lshlrev_b32 v%d, 4, v%d" % (t2, t2))
    g("v_lshlrev_b32 v%d, %d, v%d" % (t0, log2(RA), t0))
    g("v_add_u32 v%d, v%d, v%d" % (vAf, t0, t2))
    vBf = g.valloc(1)
    g("v_lshrrev_b32 v%d, 5, v%d" % (t0, vL))
    g("v_lshlrev_b32 v%d, 3, v%d" % (t0, t0))
    g("v_bfe_u32 v%d, v%d, 2, 2" % (t1, vL))
    g("v_add_u32 v%d, v%d, v%d" % (t0, t0, t1))
    if PPB == 8:
        g("v_lshrrev_b32 v%d, 1, v%d" % (t1, t1))
    g("v_lshlrev_b32 v%d, 2, v%d" % (t1, t1))
    g("v_mul_u32_u24 v%d, %d, v%d" % (t2, c.WN // 8, vWn))
    g("v_bfe_u32 v%d, v%d, 4, 1" % (t3, vL))
    g("v_lshl_add_u32 v%d, v%d, 1, v%d" % (t2, t3, t2))
    g("v_bfe_u32 v%d, v%d, 1, 1" % (t3, vL))
    g("v_add_u32 v%d, v%d, v%d" % (t2, t2, t3))
    g("v_xor_b32 v%d, v%d, v%d" % (t2, t2, t1))
    g("v_lshlrev_b32 v%d, 4, v%d" % (t2, t2))
    g("v_lshlrev_b32 v%d, %d, v%d" % (t0, log2(RB), t0))
    g("v_add_u32 v%d, v%d, v%d" % (t0, t0, t2))
    g("v_and_b32 v%d, 1, v%d" % (t3, vL))
    g("v_lshl_add_u32 v%d, v%d, 3, v%d" % (vBf, t3, t0))
    g("v_add_u32 v%d, %d, v%d" % (vBf, LDS_B0, vBf))
    vAfs = [[g.valloc(1) for _ in range(nks)] for _ in range(RSA)]
    vBfs = [[g.valloc(1) for _ in range(nj)] for _ in range(RSB)]
    for sl in range(RSA):
        for ks in range(nks):
            g("v_xor_b32 v%d, %d, v%d" % (vAfs[sl][ks], ks * 32, vAf))
            if sl:
                g("v_add_u32 v%d, %d, v%d" % (vAfs[sl][ks], sl * ASZ, vAfs[sl][ks]))
    for sl in range(RSB):
        for j in range(nj):
            g("v_xor_b32 v%d, %d, v%d" % (vBfs[sl][j], j * 64, vBf))
            if sl:
                g("v_add_u32 v%d, %d, v%d" % (vBfs[sl][j], sl * BSZ, vBfs[sl][j]))
    if c.ln:
        stats_finish(g, c, ectx, LDS_T0)
    for i in range(mi):
        for j in range(nj):
            for r in range(16):
                g("v_mov_b32 v%d, 0" % (acc[i][j] + r))

    def frag_reads(st, ks, buf):
        sl = st % RSB
        sa = st % RSA
        if 'noread' in ABL:
            return
        for j in range(nj):
            for h in range(2):
                g("ds_read_b64_tr_b16 %s, v%d offset:%d" % (vr(fB[buf][j] + 2 * h, 2), vBfs[sl][j], (ks * 16 + 4 * h) * RB))
        for i in range(mi):
            g("ds_read_b128 %s, v%d offset:%d" % (vr(fA[buf][i], 4), vAfs[sa][ks], i * 32 * RA))

    stamp(g, 1)
    save = g.L
    stage_txt = []
    step = 0
    nsteps = nst * nks
    nfr = mi + 2 * nj
    assert PD * nfr <= 15 and PD <= nks
    for st in range(nst):
        g.L = []
        g("s_barrier")
        if st == 0:
            for k in range(PD):
                frag_reads(k // nks, k % nks, k % NBUF)
        for ks in range(nks):
            k = step + PD
            if k < nsteps:
                frag_reads(k // nks, k % nks, k % NBUF)
            outstanding = min(PD, nsteps - 1 - step) * nfr
            if 'noread' in ABL:
                outstanding = 0
            g("s_waitcnt lgkmcnt(%d)" % outstanding)
            b = step % NBUF
            for i in range(mi):
                for j in range(nj):
                    if 'nomfma' in ABL:
                        continue
                    g("v_mfma_f32_32x32x16_bf16 %s, %s, %s, %s" % (
                        vr(acc[i][j], 16), vr(fB[b][j], 4), vr(fA[b][i], 4), vr(acc[i][j], 16)))
            step += 1
        stage_txt.append(g.L)
    g.L = save
    U0 = lcm(RSA, RSB)
    U = U0
    while (U * nks) % NBUF:
        U += U0
    g.collapse(stage_txt, U, name + "_c", S_CNT)
    g("s_barrier")
    g.nop(12)
    stamp(g, 2)
    for i in range(mi):
        for j in range(nj):
            for q in range(4):
                g("ds_write_b128 v%d, %s offset:%d" % (vXw, vr(acc[i][j] + 4 * q, 4), i * 32 * ERS + (j * 32 + q * 8) * 4))

    g.lab("%s_epi" % name)
    g.nv = common_nv
    g("s_waitcnt %slgkmcnt(0)" % ("vmcnt(0) " if c.ln else ""))
    g("s_barrier")
    X = [g.valloc(8, 4) for _ in range(NPASS)]
    for p in range(NPASS):
        for h in range(2):
            g("ds_read_b128 %s, v%d offset:%d" % (vr(X[p] + 4 * h, 4), E['la'], p * RPP * ERS + 16 * h))
    c.epi(g, c, E, X, NPASS, RPP)
    stamp(g, 3)
    if STAMP:
        g("s_waitcnt vmcnt(0)")
    stamp(g, 4)
    stamp_flush(g, c, 5)
    g.lab("%s_end" % name)
    g("s_endpgm")
    if getattr(c, 'prefetch', False):
        g.lab("%s_pf" % name)
        g("s_load_dwordx16 s[32:47], s[0:1], 0")
        g("s_lshl_b32 s%d, s2, 15" % S_SOA)
        g("s_mul_i32 s%d, s2, 3136" % S_SOB)
        g("v_lshlrev_b32 v1, 4, v0")
        g("s_waitcnt lgkmcnt(0)")
        mk_srd(g, SRD_A, 'w_sp', 0, S_ * S_ * 2)
        mk_srd(g, SRD_B, 'w_out', 0, FH * D_ * 2)
        g("buffer_load_dwordx4 v[68:71], v1, s[%d:%d], s%d offen" % (SRD_B, SRD_B + 3, S_SOB))
        for k in range(4):
            g("buffer_load_dwordx4 v[%d:%d], v1, s[%d:%d], s%d offen" % (4 + 4 * k, 7 + 4 * k, SRD_A, SRD_A + 3, S_SOA))
            g("s_add_u32 s%d, s%d, 8192" % (S_SOA, S_SOA))
        g("s_endpgm")
    c.nvgpr = g.nvmax
    return g


def stats_issue(g, c, ctx, alias):
    v1 = alias
    vS = [v1, v1 + 28]
    ctx['vS'] = vS
    t = g.valloc(1)
    ctx['vSoff'] = t
    g("v_lshlrev_b32 v%d, 4, v0" % t)
    for r in range(2):
        for j in range(7):
            off = (j * 2048 + r * 1024) * 8
            g("s_mov_b32 s%d, %d" % (S_T0, off))
            g.vmem("buffer_load_dwordx4 %s, v%d, s[%d:%d], s%d offen" % (vr(vS[r] + j * 4, 4), t, SRD_E, SRD_E + 3, S_T0), ("S", 0))


def stats_finish(g, c, ctx, LDS_T0):
    vS = ctx['vS']
    t = ctx['vSoff']
    nv0 = g.nv
    H = [(r, h) for r in range(2) for h in range(2)]
    a = {k: g.valloc(1) for k in H}; b = {k: g.valloc(1) for k in H}
    dsb = g.valloc(8, 2)
    d = {k: dsb + n for n, k in enumerate(H)}; s = {k: dsb + 4 + n for n, k in enumerate(H)}
    o = [dsb, dsb + 4]
    c128 = g.valloc(1)
    g("v_mov_b32 v%d, 0x%x" % (c128, f2u(128.0)))
    g("v_add_u32 v%d, %d, v%d" % (t, LDS_T0, t))
    g.wait_vm(("S", 0))
    def M(j, k): return vS[k[0]] + 4 * j + 2 * k[1]
    def Q(j, k): return vS[k[0]] + 4 * j + 2 * k[1] + 1
    for k in H:
        g("v_add_f32 v%d, v%d, v%d" % (a[k], M(0, k), M(1, k)))
        g("v_add_f32 v%d, v%d, v%d" % (b[k], Q(0, k), Q(1, k)))
    for j in range(2, 7):
        for k in H:
            g("v_add_f32 v%d, v%d, v%d" % (a[k], a[k], M(j, k)))
            g("v_add_f32 v%d, v%d, v%d" % (b[k], b[k], Q(j, k)))
    for k in H:
        g("v_mul_f32 v%d, 0x%x, v%d" % (a[k], f2u(1.0 / 7.0), a[k]))
        g("v_mov_b32 v%d, 0" % s[k])
    for j in range(7):
        for k in H:
            g("v_sub_f32 v%d, v%d, v%d" % (d[k], M(j, k), a[k]))
        for k in H:
            g("v_fmac_f32 v%d, v%d, v%d" % (s[k], d[k], d[k]))
    for k in H:
        g("v_fmac_f32 v%d, v%d, v%d" % (b[k], s[k], c128))
    for k in H:
        g("v_mul_f32 v%d, 0x%x, v%d" % (b[k], f2u(1.0 / 896.0), b[k]))
    for k in H:
        g("v_cvt_pk_bf16_f32 v%d, v%d, v%d" % (d[k], a[k], b[k]))
    for k in H:
        g("v_lshlrev_b32 v%d, 16, v%d" % (a[k], d[k]))
        g("v_and_b32 v%d, 0xffff0000, v%d" % (b[k], d[k]))
    for k in H:
        g("v_add_f32 v%d, 0x%x, v%d" % (b[k], f2u(1e-5), b[k]))
    for k in H:
        g("v_cvt_pk_bf16_f32 v%d, v%d, v%d" % (b[k], b[k], b[k]))
    for k in H:
        g("v_lshlrev_b32 v%d, 16, v%d" % (b[k], b[k]))
    for k in H:
        g("v_sqrt_f32 v%d, v%d" % (b[k], b[k]))
    for k in H:
        g("v_cvt_pk_bf16_f32 v%d, v%d, v%d" % (b[k], b[k], b[k]))
    for k in H:
        g("v_lshlrev_b32 v%d, 16, v%d" % (b[k], b[k]))
    for k in H:
        g("v_rcp_f32 v%d, v%d" % (o[k[0]] + 2 * k[1], b[k]))
    for k in H:
        g("v_mul_f32 v%d, v%d, v%d" % (o[k[0]] + 2 * k[1] + 1, a[k], o[k[0]] + 2 * k[1]))
    for k in H:
        g("v_sub_f32 v%d, 0, v%d" % (o[k[0]] + 2 * k[1] + 1, o[k[0]] + 2 * k[1] + 1))
    for r in range(2):
        g("ds_write_b128 v%d, %s offset:%d" % (t, vr(o[r], 4), r * 1024 * 8))
    g("s_waitcnt lgkmcnt(0)")
    g("s_barrier")
    g.nv = nv0


def unpack8(g, dst, src):
    for d in range(4):
        g("v_lshlrev_b32 v%d, 16, v%d" % (dst + 2 * d, src + d))
        g("v_and_b32 v%d, 0xffff0000, v%d" % (dst + 2 * d + 1, src + d))


def pack8(g, dst, src):
    for d in range(4):
        g("v_cvt_pk_bf16_f32 v%d, v%d, v%d" % (dst + d, src + 2 * d, src + 2 * d + 1))


def store_pass(g, c, E, P, p, RPP):
    g("s_mov_b32 s%d, %d" % (S_T0, p * RPP * c.ldc))
    g.vmem("buffer_store_dwordx4 %s, v%d, s[%d:%d], s%d offen %s" % (vr(P, 4), E['co'], SRD_C, SRD_C + 3, S_T0, os.environ.get('STF', 'sc1')), ("ST", 0))


def regs_none(g, c, E, NPASS):
    pass


def pre_none(g, c, E, NPASS, RPP, T):
    pass


def dpp_sum16(g, dst, tmp):
    for pat in ("quad_perm:[1,0,3,2]", "quad_perm:[2,3,0,1]", "row_half_mirror", "row_mirror"):
        g("s_nop 1")
        g("v_add_f32_dpp v%d, v%d, v%d %s row_mask:0xf bank_mask:0xf" % (dst, dst, dst, pat))


def regs_k1(g, c, E, NPASS):
    E['sa'] = g.valloc(1)


def pre_k1(g, c, E, NPASS, RPP, T):
    t0, t1, t2, t3 = T
    g("s_sub_u32 s%d, s%d, 7" % (S_T0, S_TN))
    g("s_lshl_b32 s%d, s%d, 11" % (S_T0, S_T0))
    g("v_add_u32 v%d, s%d, v%d" % (t2, S_T0, t1))
    g("v_lshlrev_b32 v%d, 3, v%d" % (E['sa'], t2))


def epi_k1(g, c, E, X, NPASS, RPP):
    K1c = g.valloc(2, 2); K2c = g.valloc(2, 2)
    k1 = -2.0 * 0.7978845608028654 * 1.4426950408889634
    k2 = k1 * 0.044715
    for h in range(2):
        g("v_mov_b32 v%d, 0x%x" % (K1c + h, f2u(k1)))
        g("v_mov_b32 v%d, 0x%x" % (K2c + h, f2u(k2)))
    T = [g.valloc(8, 2) for _ in range(2)]
    P = [g.valloc(4, 4) for _ in range(NPASS)]
    g("s_waitcnt lgkmcnt(0)")
    for p0 in range(0, NPASS, 2):
        ps = [p0, p0 + 1]
        for p in ps:
            pack8(g, P[p], X[p])
        for p in ps:
            unpack8(g, X[p], P[p])
        for p in ps:
            for d in range(4):
                g("v_pk_mul_f32 %s, %s, %s" % (vr(T[p & 1] + 2 * d, 2), vr(X[p] + 2 * d, 2), vr(X[p] + 2 * d, 2)))
        for p in ps:
            for d in range(4):
                g("v_pk_fma_f32 %s, %s, %s, %s" % (vr(T[p & 1] + 2 * d, 2), vr(T[p & 1] + 2 * d, 2), vr(K2c, 2), vr(K1c, 2)))
        for p in ps:
            for d in range(4):
                g("v_pk_mul_f32 %s, %s, %s" % (vr(T[p & 1] + 2 * d, 2), vr(T[p & 1] + 2 * d, 2), vr(X[p] + 2 * d, 2)))
        for p in ps:
            for r in range(8):
                g("v_exp_f32 v%d, v%d" % (T[p & 1] + r, T[p & 1] + r))
        for p in ps:
            for r in range(8):
                g("v_add_f32 v%d, 1.0, v%d" % (T[p & 1] + r, T[p & 1] + r))
        for p in ps:
            for r in range(8):
                g("v_rcp_f32 v%d, v%d" % (T[p & 1] + r, T[p & 1] + r))
        for p in ps:
            for d in range(4):
                g("v_pk_mul_f32 %s, %s, %s" % (vr(T[p & 1] + 2 * d, 2), vr(T[p & 1] + 2 * d, 2), vr(X[p] + 2 * d, 2)))
        for p in ps:
            pack8(g, P[p], T[p & 1])
        for p in ps:
            store_pass(g, c, E, P[p], p, RPP)
    g("s_cmp_lt_u32 s%d, 7" % S_TN)
    g("s_cbranch_scc1 %s_nostats" % c.name)
    for p in range(NPASS):
        unpack8(g, X[p], P[p])
    S = [g.valloc(2, 2) for _ in range(NPASS)]
    MN = [g.valloc(2, 2) for _ in range(NPASS)]
    O = [g.valloc(2, 2) for _ in range(NPASS)]
    for p in range(NPASS):
        g("v_pk_add_f32 %s, %s, %s" % (vr(S[p], 2), vr(X[p], 2), vr(X[p] + 2, 2)))
    for d in range(2, 4):
        for p in range(NPASS):
            g("v_pk_add_f32 %s, %s, %s" % (vr(S[p], 2), vr(S[p], 2), vr(X[p] + 2 * d, 2)))
    for p in range(NPASS):
        g("v_add_f32 v%d, v%d, v%d" % (O[p], S[p], S[p] + 1))
    for pat in ("quad_perm:[1,0,3,2]", "quad_perm:[2,3,0,1]", "row_half_mirror", "row_mirror"):
        g("s_nop 1")
        for p in range(NPASS):
            g("v_add_f32_dpp v%d, v%d, v%d %s row_mask:0xf bank_mask:0xf" % (O[p], O[p], O[p], pat))
    for p in range(NPASS):
        g("v_mul_f32 v%d, 0x%x, v%d" % (O[p], f2u(1.0 / 128.0), O[p]))
    for p in range(NPASS):
        g("v_sub_f32 v%d, 0, v%d" % (MN[p], O[p]))
        g("v_sub_f32 v%d, 0, v%d" % (MN[p] + 1, O[p]))
    for d in range(4):
        for p in range(NPASS):
            g("v_pk_add_f32 %s, %s, %s" % (vr(X[p] + 2 * d, 2), vr(X[p] + 2 * d, 2), vr(MN[p], 2)))
    for p in range(NPASS):
        g("v_pk_mul_f32 %s, %s, %s" % (vr(S[p], 2), vr(X[p], 2), vr(X[p], 2)))
    for d in range(1, 4):
        for p in range(NPASS):
            g("v_pk_fma_f32 %s, %s, %s, %s" % (vr(S[p], 2), vr(X[p] + 2 * d, 2), vr(X[p] + 2 * d, 2), vr(S[p], 2)))
    for p in range(NPASS):
        g("v_add_f32 v%d, v%d, v%d" % (O[p] + 1, S[p], S[p] + 1))
    for pat in ("quad_perm:[1,0,3,2]", "quad_perm:[2,3,0,1]", "row_half_mirror", "row_mirror"):
        g("s_nop 1")
        for p in range(NPASS):
            g("v_add_f32_dpp v%d, v%d, v%d %s row_mask:0xf bank_mask:0xf" % (O[p] + 1, O[p] + 1, O[p] + 1, pat))
    t = g.valloc(1)
    g("v_and_b32 v%d, 15, v0" % t)
    g("v_cmp_eq_u32 vcc, 0, v%d" % t)
    g("s_and_saveexec_b64 s[60:61], vcc")
    for p in range(NPASS):
        g.vmem("buffer_store_dwordx2 %s, v%d, s[%d:%d], 0 offen offset:%d" % (vr(O[p], 2), E['sa'], SRD_E, SRD_E + 3, p * RPP * 8), ("ST", 0))
    g("s_mov_b64 exec, s[60:61]")
    g.lab("%s_nostats" % c.name)


def regs_k2(g, c, E, NPASS):
    E['z'] = [g.valloc(4, 2) for _ in range(NPASS)]
    E['b'] = [g.valloc(1) for _ in range(NPASS)]


def pre_k2(g, c, E, NPASS, RPP, T):
    t0, t1, t2, t3 = T
    g("s_mov_b32 s%d, %d" % (S_T1, F_ * 2))
    g("v_mul_lo_u32 v%d, v%d, s%d" % (t2, t1, S_T1))
    g("v_lshl_add_u32 v%d, v%d, 4, v%d" % (t2, t0, t2))
    g("s_mul_i32 s%d, s%d, %d" % (S_T0, S_TN, c.BN * 2))
    g("v_add_u32 v%d, s%d, v%d" % (t2, S_T0, t2))
    for p in range(NPASS):
        g("s_mov_b32 s%d, %d" % (S_T0, p * RPP * F_ * 2))
        g.vmem("buffer_load_dwordx4 %s, v%d, s[%d:%d], s%d offen" % (vr(E['z'][p], 4), t2, SRD_D, SRD_D + 3, S_T0), ("Z", 0))
    mk_srd(g, SRD_F, 'b_sp', 0, S_ * 2)
    g("v_lshlrev_b32 v%d, 1, v%d" % (t3, t1))
    for p in range(NPASS):
        g.vmem("buffer_load_ushort v%d, v%d, s[%d:%d], 0 offen offset:%d" % (E['b'][p], t3, SRD_F, SRD_F + 3, p * RPP * 2), ("Z", 0))


def epi_k2(g, c, E, X, NPASS, RPP):
    Y = [g.valloc(8, 2) for _ in range(NPASS)]
    B2 = [g.valloc(2, 2) for _ in range(NPASS)]
    P = [g.valloc(4, 4) for _ in range(NPASS)]
    PS = range(NPASS)
    for p in PS:
        g("v_lshlrev_b32 v%d, 16, v%d" % (B2[p], E['b'][p]))
        g("v_lshlrev_b32 v%d, 16, v%d" % (B2[p] + 1, E['b'][p]))
        unpack8(g, Y[p], E['z'][p])
    g("s_waitcnt lgkmcnt(0)")
    for p in PS:
        pack8(g, P[p], X[p])
    for p in PS:
        unpack8(g, X[p], P[p])
    for p in PS:
        for d in range(4):
            g("v_pk_add_f32 %s, %s, %s" % (vr(X[p] + 2 * d, 2), vr(X[p] + 2 * d, 2), vr(B2[p], 2)))
    for p in PS:
        pack8(g, P[p], X[p])
    for p in PS:
        unpack8(g, X[p], P[p])
    for p in PS:
        for d in range(4):
            g("v_pk_mul_f32 %s, %s, %s" % (vr(X[p] + 2 * d, 2), vr(X[p] + 2 * d, 2), vr(Y[p] + 2 * d, 2)))
    for p in PS:
        pack8(g, P[p], X[p])
    for p in PS:
        store_pass(g, c, E, P[p], p, RPP)


def epi_k3(g, c, E, X, NPASS, RPP):
    P = [g.valloc(4, 4) for _ in range(NPASS)]
    g("s_waitcnt lgkmcnt(0)")
    for p in range(NPASS):
        pack8(g, P[p], X[p])
    for p in range(NPASS):
        store_pass(g, c, E, P[p], p, RPP)


def main():
    k1 = Cfg()
    k1.name = "gemm1_kernel"; k1.K = D_; k1.BM = 128; k1.BN = 128; k1.BK = 64; k1.WM = 64; k1.WN = 64
    k1.mode = 'dma'; k1.slots = 5; k1.PD = 2; k1.lda = D_ * 2; k1.ldb = F_ * 2; k1.ldc = F_ * 2; k1.TM = 16; k1.TN = 14; k1.ln = False
    k1.a_buf = ('x', 0, S_ * D_ * 2); k1.b_buf = ('w_in', 0, D_ * F_ * 2); k1.c_buf = ('ws', WS_Z, S_ * F_ * 2)
    k1.e_buf = ('ws', WS_ST, 7 * 2048 * 8)
    k1.prefetch = not os.environ.get('NOPF'); k1.epi_regs = regs_k1; k1.epi_pre = pre_k1; k1.epi = epi_k1

    k2 = Cfg()
    k2.name = "gemm2_kernel"; k2.K = S_; k2.BM = 128; k2.BN = 64; k2.BK = 64; k2.WM = 32; k2.WN = 64
    k2.amode = os.environ.get('AMODE', 'dma'); k2.slots = int(os.environ.get('RSA', 6)); k2.nload = int(os.environ.get('NL', 2)); k2.DA = int(os.environ.get('DA', 6)); k2.DB = int(os.environ.get('DB', 6)); k2.PD = 3; k2.lda = S_ * 2; k2.ldb = F_ * 2; k2.ldc = FH * 2; k2.TM = 16; k2.TN = 14; k2.ln = True
    k2.b_col0 = FH
    k2.a_buf = ('w_sp', 0, S_ * S_ * 2); k2.b_buf = ('ws', WS_Z, S_ * F_ * 2); k2.c_buf = ('ws', WS_H, S_ * FH * 2)
    k2.d_buf = ('ws', WS_Z, S_ * F_ * 2); k2.e_buf = ('ws', WS_ST, 7 * 2048 * 8)
    k2.epi_regs = regs_k2; k2.epi_pre = pre_k2; k2.epi = epi_k2

    k3 = Cfg()
    k3.name = "gemm3_kernel"; k3.K = FH; k3.BM = 64; k3.BN = 64; k3.BK = 128; k3.WM = 32; k3.WN = 32
    k3.mode = 'dma'; k3.slots = 5; k3.PD = 5; k3.lda = FH * 2; k3.ldb = D_ * 2; k3.ldc = D_ * 2; k3.TM = 32; k3.TN = 7; k3.ln = False
    k3.a_buf = ('ws', WS_H, S_ * FH * 2); k3.b_buf = ('w_out', 0, FH * D_ * 2); k3.c_buf = ('out', 0, S_ * D_ * 2)
    k3.epi_regs = regs_none; k3.epi_pre = pre_none; k3.epi = epi_k3

    ks = [k1, k2, k3]
    for i, k in enumerate(ks):
        k.kid = i
    gs = [gen_kernel(k) for k in ks]
    out = []
    hdr = open("standalone__mixer_gmlp__prompt.s.ref").read().splitlines()
    for ln in hdr:
        if ln.startswith(";") and "@launch" not in ln:
            out.append(ln)
    for k in ks:
        out.append("; @launch kernel=%s grid=(%d,1,1) block=(%d,1,1) lds=%d" % (k.name, k.TM * k.TN + (32 if getattr(k, 'prefetch', False) else 0), 512 + 64 * (k.nload if k.ln else 0), k.lds))
    out.append('.amdgcn_target "amdgcn-amd-amdhsa--gfx950"')
    out.append(".text")
    for k, g in zip(ks, gs):
        out.append(".globl %s" % k.name)
        out.append(".p2align 8")
        out.append(".type %s,@function" % k.name)
        out += g.L
    out.append('.section .rodata,"a"')
    for k in ks:
        nv = max(k.nvgpr, 8)
        assert nv <= 256, (k.name, nv)
        ao = (nv + 3) // 4 * 4
        out.append(".p2align 6")
        out.append(".amdhsa_kernel %s" % k.name)
        out.append("  .amdhsa_next_free_vgpr %d" % nv)
        out.append("  .amdhsa_next_free_sgpr 96")
        out.append("  .amdhsa_accum_offset %d" % ao)
        out.append("  .amdhsa_group_segment_fixed_size 0")
        out.append("  .amdhsa_kernarg_size 64")
        out.append("  .amdhsa_user_sgpr_count 2")
        out.append("  .amdhsa_user_sgpr_kernarg_segment_ptr 1")
        out.append("  .amdhsa_system_sgpr_workgroup_id_x 1")
        out.append("  .amdhsa_float_denorm_mode_32 3")
        out.append(".end_amdhsa_kernel")
        sys.stderr.write("%s: vgpr=%d lds=%d\n" % (k.name, k.nvgpr, k.lds))
    open(sys.argv[1] if len(sys.argv) > 1 else "standalone__mixer_gmlp__prompt.s", "w").write("\n".join(out) + "\n")


main()
```

```python
import sys, struct, math, os
STAMP = os.environ.get('STAMP', '')
ABL = os.environ.get('ABL', '')

S_, D_, F_, FH = 2048, 448, 1792, 896
WS_Z = 0
WS_ST = 0x800000
WS_H = 0x900000


def f2u(x):
    return struct.unpack('<I', struct.pack('<f', x))[0]


def log2(x):
    l = x.bit_length() - 1
    assert 1 << l == x, x
    return l


def lcm(a, b):
    return a * b // math.gcd(a, b)


class G:
    def __init__(self):
        self.L = []
        self.vm = []
        self.nv = 0
        self.nvmax = 0

    def __call__(self, s):
        self.L.append("  " + s)

    def lab(self, s):
        self.L.append(s + ":")

    def nop(self, n):
        while n > 0:
            k = min(n, 16)
            self("s_nop %d" % (k - 1))
            n -= k

    def vmem(self, s, tag):
        self(s)
        self.vm.append(tag)

    def wait_vm(self, tag, extra=""):
        idx = -1
        for i, t in enumerate(self.vm):
            if t == tag:
                idx = i
        if idx < 0:
            if extra:
                self("s_waitcnt " + extra)
            return
        n = len(self.vm) - 1 - idx
        assert n <= 63
        self("s_waitcnt vmcnt(%d) %s" % (n, extra))
        self.vm = self.vm[idx + 1:]

    def valloc(self, n, align=1):
        self.nv = (self.nv + align - 1) // align * align
        r = self.nv
        self.nv += n
        self.nvmax = max(self.nvmax, self.nv)
        return r

    def collapse(self, stage_txt, U, name, cnt_sgpr):
        nst = len(stage_txt)
        grp = [sum(stage_txt[s0:s0 + U], []) for s0 in range(0, nst, U)]
        i = 0
        nloop = 0
        while i < len(grp):
            j = i
            while j + 1 < len(grp) and grp[j + 1] == grp[i]:
                j += 1
            cnt = j - i + 1
            if cnt >= 2:
                lab = "%s_loop%d" % (name, nloop)
                nloop += 1
                self("s_mov_b32 s%d, %d" % (cnt_sgpr, cnt))
                self.lab(lab)
                self.L += grp[i]
                self("s_sub_u32 s%d, s%d, 1" % (cnt_sgpr, cnt_sgpr))
                self("s_cmp_lg_u32 s%d, 0" % cnt_sgpr)
                self("s_cbranch_scc1 %s" % lab)
            else:
                self.L += grp[i]
            i = j + 1


def vr(b, n=1):
    return "v%d" % b if n == 1 else "v[%d:%d]" % (b, b + n - 1)


class Cfg:
    pass


SRD_A, SRD_B, SRD_C, SRD_D, SRD_E, SRD_F = 8, 12, 16, 20, 24, 28
S_TM, S_TN, S_W, S_SOA, S_SOB = 48, 49, 50, 51, 52
S_M0A, S_M0B, S_CNT, S_T0, S_T1, S_T2, S_T3 = 53, 54, 55, 56, 57, 58, 59
PTR = dict(x=32, w_in=34, w_sp=36, b_sp=38, w_out=40, out=42, dbg=44, ws=46)


def mk_srd(g, srd, ptr, off, nbytes):
    p = PTR[ptr]
    if off:
        g("s_add_u32 s%d, s%d, 0x%x" % (srd, p, off))
        g("s_addc_u32 s%d, s%d, 0" % (srd + 1, p + 1))
    else:
        g("s_mov_b32 s%d, s%d" % (srd, p))
        g("s_mov_b32 s%d, s%d" % (srd + 1, p + 1))
    g("s_and_b32 s%d, s%d, 0xffff" % (srd + 1, srd + 1))
    g("s_mov_b32 s%d, 0x%x" % (srd + 2, nbytes))
    g("s_mov_b32 s%d, 0x20000" % (srd + 3))


def stamp(g, k):
    if STAMP and getattr(g, 'phase2', False) and k in (1, 2):
        if k == 2:
            return
        k = 4
    if STAMP:
        g("s_memrealtime s[%d:%d]" % (64 + 2 * k, 65 + 2 * k))
        g("s_waitcnt lgkmcnt(0)")


def stamp_flush(g, c, n):
    if not STAMP:
        return
    g("s_and_b32 s%d, s%d, 3" % (S_T0, S_T3))
    g("s_cmp_lg_u32 s%d, 0" % S_T0)
    g("s_cbranch_scc1 %s_nostamp" % (c.name))
    mk_srd(g, 88, 'ws', 0x2000000 + c.kid * 0x10000, 0x10000)
    g("s_lshl_b32 s%d, s2, 7" % S_T0)
    g("s_lshl_b32 s%d, s%d, 4" % (S_T1, S_T3))
    g("s_add_u32 s%d, s%d, s%d" % (S_T0, S_T0, S_T1))
    g("v_mov_b32 v1, s%d" % S_T0)
    for k in range(n):
        g("v_mov_b32 v2, s%d" % (64 + 2 * k))
        g("buffer_store_dword v2, v1, s[88:91], 0 offen offset:%d" % (4 * k))
        g("s_nop 1")
    g.lab("%s_nostamp" % (c.name))


def interleave(g, emit_main, slots):
    save = g.L
    g.L = []
    emit_main()
    main = g.L
    g.L = save
    n = len(slots)
    if n == 0:
        g.L += main
        return
    step = max(1, len(main) // n)
    pos = 0
    for k, sfn in enumerate(slots):
        sfn()
        end = len(main) if k == n - 1 else min(len(main), pos + step)
        g.L += main[pos:end]
        pos = end


def gen_kernel(c, g=None):
    fused = g is not None
    if not fused:
        g = G()
    name = c.name
    NP = 4
    RA = c.BK * 2
    RB = c.BN * 2
    PPA, PPB = RA // 16, RB // 16
    ASZ, BSZ = c.BM * RA, c.BK * RB
    nA = ASZ // 1024 // NP
    nB = BSZ // 1024 // NP
    mi, nj, nks = c.WM // 32, c.WN // 32, c.BK // 16
    wpn = c.BN // c.WN
    nst = c.K // c.BK
    RSA = c.slots
    RSB = 4 if c.ln else c.slots
    LDS_A0 = 0
    LDS_B0 = RSA * ASZ
    LDS_T0 = LDS_B0 + RSB * BSZ
    lds_total = LDS_T0 + (2048 * 8 if c.ln else 0)
    ERS = c.BN * 4 + 16
    lds_total = max(lds_total, c.BM * ERS)
    assert lds_total <= 160 * 1024, lds_total
    c.lds = lds_total
    CPR = c.BN // 8
    RPP = 512 // CPR
    NPASS = c.BM // RPP

    if not fused:
        g.lab(name)
        if getattr(c, 'prefetch', False):
            g("s_cmp_ge_u32 s2, %d" % (c.TM * c.TN + 32))
            g("s_cbranch_scc1 %s_end" % name)
            g("s_cmp_ge_u32 s2, %d" % (c.TM * c.TN))
            g("s_cbranch_scc1 %s_pf" % name)
        else:
            g("s_cmp_ge_u32 s2, %d" % (c.TM * c.TN))
            g("s_cbranch_scc1 %s_end" % name)
        stamp(g, 0)
        g("s_load_dwordx16 s[32:47], s[0:1], 0")
        g("s_and_b32 s%d, s2, 7" % S_T0)
        g("s_lshr_b32 s%d, s2, 3" % S_T1)
        g("s_and_b32 s%d, s%d, 3" % (S_TM, S_T1))
        g("s_lshr_b32 s%d, s%d, 2" % (S_TN, S_T1))
        if c.TN == 14:
            g("s_lshr_b32 s%d, s%d, 1" % (S_T2, S_T0))
            g("s_lshl_b32 s%d, s%d, 2" % (S_T2, S_T2))
            g("s_add_u32 s%d, s%d, s%d" % (S_TM, S_TM, S_T2))
            g("s_and_b32 s%d, s%d, 1" % (S_T2, S_T0))
            g("s_mul_i32 s%d, s%d, 7" % (S_T2, S_T2))
            g("s_add_u32 s%d, s%d, s%d" % (S_TN, S_TN, S_T2))
        else:
            assert c.TN == 7
            g("s_lshl_b32 s%d, s%d, 2" % (S_T2, S_T0))
            g("s_add_u32 s%d, s%d, s%d" % (S_TM, S_TM, S_T2))
    g.nv = 1
    vL = g.valloc(1)
    vW = g.valloc(1)
    t0 = g.valloc(1); t1 = g.valloc(1); t2 = g.valloc(1); t3 = g.valloc(1)
    g("v_and_b32 v%d, 63, v0" % vL)
    g("v_lshrrev_b32 v%d, 6, v0" % vW)
    g("s_nop 0")
    g("v_readfirstlane_b32 s%d, v%d" % (S_W, vW))
    g("v_and_b32 v%d, 3, v%d" % (vW, vW))
    E = {}
    E['row'] = g.valloc(1)
    E['la'] = g.valloc(1)
    E['co'] = g.valloc(1)
    c.epi_regs(g, c, E, NPASS)
    g("s_mov_b32 s%d, s%d" % (S_T3, S_W))
    g("s_cmp_lt_u32 s%d, 4" % S_W)
    g("s_cbranch_scc1 %s_cons" % name)
    common_nv = g.nv

    def epi_setup():
        g("v_lshrrev_b32 v%d, %d, v0" % (E['row'], log2(CPR)))
        g("v_and_b32 v%d, %d, v0" % (t0, CPR - 1))
        g("v_mul_u32_u24 v%d, %d, v%d" % (t1, ERS, E['row']))
        g("v_lshl_add_u32 v%d, v%d, 5, v%d" % (E['la'], t0, t1))
        g("s_mul_i32 s%d, s%d, %d" % (S_T0, S_TM, c.BM))
        g("v_add_u32 v%d, s%d, v%d" % (t1, S_T0, E['row']))
        g("s_mov_b32 s%d, %d" % (S_T1, c.ldc))
        g("v_mul_lo_u32 v%d, v%d, s%d" % (t2, t1, S_T1))
        g("s_mul_i32 s%d, s%d, %d" % (S_T0, S_TN, c.BN * 2))
        g("v_lshl_add_u32 v%d, v%d, 4, v%d" % (t3, t0, t2))
        g("v_add_u32 v%d, s%d, v%d" % (E['co'], S_T0, t3))
        c.epi_pre(g, c, E, NPASS, RPP, (t0, t1, t2, t3))

    split = c.ln
    NL = c.nload if split else 0
    rpcA, rpcB = 1024 // RA, 1024 // RB

    def a_offsets(nw, vWx):
        n = ASZ // 1024 // nw
        vAs = [g.valloc(1) for _ in range(n)]
        g("s_mul_i32 s%d, s%d, %d" % (S_T0, S_TM, c.BM * c.lda))
        g("s_mov_b32 s%d, %d" % (S_T1, c.lda))
        for q in range(n):
            g("v_lshrrev_b32 v%d, %d, v%d" % (t0, log2(PPA), vL))
            g("v_mul_u32_u24 v%d, %d, v%d" % (t1, n * rpcA, vWx))
            g("v_add3_u32 v%d, v%d, v%d, %d" % (t0, t0, t1, q * rpcA))
            if PPA == 8:
                g("v_bfe_u32 v%d, v%d, 1, 3" % (t1, t0))
            else:
                assert PPA == 16
                g("v_and_b32 v%d, 15, v%d" % (t1, t0))
            g("v_and_b32 v%d, %d, v%d" % (t2, PPA - 1, vL))
            g("v_xor_b32 v%d, v%d, v%d" % (t2, t2, t1))
            g("v_lshlrev_b32 v%d, 4, v%d" % (t2, t2))
            g("v_mul_lo_u32 v%d, v%d, s%d" % (t0, t0, S_T1))
            g("v_add3_u32 v%d, v%d, v%d, s%d" % (vAs[q], t0, t2, S_T0))
        return vAs

    def a_dma(vAs, st):
        sl = st % RSA
        for q in range(len(vAs)):
            g("s_add_u32 m0, s%d, %d" % (S_M0A, LDS_A0 + sl * ASZ + q * 1024))
            g("s_nop 0")
            g.vmem("buffer_load_dwordx4 v%d, s[%d:%d], s%d offen lds" % (vAs[q], SRD_A, SRD_A + 3, S_SOA), st)
        g("s_add_u32 s%d, s%d, %d" % (S_SOA, S_SOA, c.BK * 2))

    if split:
        g("s_cmp_lt_u32 s%d, 8" % S_W)
        g("s_cbranch_scc1 %s_bw" % name)
        if c.amode == 'dma':
            g("s_sub_u32 s%d, s%d, 8" % (S_W, S_W))
            vAs = a_offsets(NL, vW)
            g("s_mul_i32 s%d, s%d, %d" % (S_M0A, S_W, len(vAs) * 1024))
            g("s_mov_b32 s%d, 0" % S_SOA)
            g("s_waitcnt lgkmcnt(0)")
            mk_srd(g, SRD_A, *c.a_buf)
            for st in range(2):
                a_dma(vAs, st)
            g("s_barrier")
            for st in range(2, min(RSA, nst)):
                a_dma(vAs, st)
            g.wait_vm(1)
            save = g.L
            stage_txt = []
            for b in range(nst):
                g.L = []
                g("s_barrier")
                if b >= 1 and b - 1 + RSA < nst:
                    a_dma(vAs, b - 1 + RSA)
                if b + 2 < nst:
                    g.wait_vm(b + 2)
                stage_txt.append(g.L)
            g.L = save
            g.collapse(stage_txt, RSA, name + "_l", S_CNT)
            g("s_endpgm")
            g.vm = []
        else:
            vAs = a_offsets(NL, vW)
            nAl = len(vAs)
            DA = c.DA
            vAw = g.valloc(1)
            g("v_mul_u32_u24 v%d, %d, v%d" % (t0, nAl * 1024, vW))
            g("v_lshl_add_u32 v%d, v%d, 4, v%d" % (vAw, vL, t0))
            vAr = [[g.valloc(4, 2) for _ in range(nAl)] for _ in range(DA)]
            g("s_mov_b32 s%d, 0" % S_SOA)
            g("s_waitcnt lgkmcnt(0)")
            mk_srd(g, SRD_A, *c.a_buf)

            def a_slots(st):
                rs = st % DA
                out = []
                if 'noAl' in ABL:
                    return out
                for q in range(nAl):
                    def f(q=q):
                        g.vmem("buffer_load_dwordx4 %s, v%d, s[%d:%d], s%d offen" % (vr(vAr[rs][q], 4), vAs[q], SRD_A, SRD_A + 3, S_SOA), st)
                        if q == nAl - 1:
                            g("s_add_u32 s%d, s%d, %d" % (S_SOA, S_SOA, c.BK * 2))
                    out.append(f)
                return out

            def a_write(st):
                if 'noAw' in ABL:
                    return
                for q in range(nAl):
                    g("ds_write_b128 v%d, %s offset:%d" % (vAw, vr(vAr[st % DA][q], 4), (st % RSA) * ASZ + q * 1024))

            for st in range(2):
                for f in a_slots(st):
                    f()
            g("s_barrier")
            for st in range(2, DA):
                for f in a_slots(st):
                    f()
            g.wait_vm(0)
            a_write(0)
            g.wait_vm(1)
            a_write(1)
            g("s_waitcnt lgkmcnt(0)")
            g.wait_vm(2)
            interleave(g, lambda: a_write(2), a_slots(DA) + a_slots(DA + 1))
            save = g.L
            stage_txt = []
            for b in range(nst):
                g.L = []
                g("s_barrier")
                if b + 3 < nst:
                    g.wait_vm(b + 3)
                    interleave(g, lambda: a_write(b + 3), a_slots(b + 2 + DA) if b + 2 + DA < nst else [])
                    g("s_waitcnt lgkmcnt(%d)" % (0 if 'noAw' in ABL else nAl))
                elif b + 2 < nst:
                    g("s_waitcnt lgkmcnt(0)")
                stage_txt.append(g.L)
            g.L = save
            g.collapse(stage_txt, lcm(RSA, DA), name + "_l", S_CNT)
            g("s_endpgm")
            g.vm = []
        g.lab("%s_bw" % name)
        g.nv = common_nv
        if os.environ.get('BPRIO'):
            g("s_setprio %s" % os.environ['BPRIO'])

    g("s_sub_u32 s%d, s%d, 4" % (S_W, S_W))
    if not split:
        vAs = a_offsets(NP, vW)
    vBs = [g.valloc(1) for _ in range(nB)]
    g("s_mul_i32 s%d, s%d, %d" % (S_T0, S_TN, c.BN * 2))
    if getattr(c, 'b_col0', 0):
        g("s_add_u32 s%d, s%d, %d" % (S_T0, S_T0, c.b_col0 * 2))
    g("s_mov_b32 s%d, %d" % (S_T1, c.ldb))
    vBrow = []
    for q in range(nB):
        g("v_lshrrev_b32 v%d, %d, v%d" % (t0, log2(PPB), vL))
        g("v_mul_u32_u24 v%d, %d, v%d" % (t1, nB * rpcB, vW))
        g("v_add3_u32 v%d, v%d, v%d, %d" % (t0, t0, t1, q * rpcB))
        if c.ln:
            r = g.valloc(1)
            vBrow.append(r)
            g("v_lshlrev_b32 v%d, 3, v%d" % (r, t0))
            g("v_add_u32 v%d, %d, v%d" % (r, LDS_T0, r))
        if PPB == 8:
            g("v_bfe_u32 v%d, v%d, 1, 1" % (t1, t0))
        else:
            assert PPB == 16
            g("v_and_b32 v%d, 3, v%d" % (t1, t0))
        g("v_lshlrev_b32 v%d, 2, v%d" % (t1, t1))
        g("v_and_b32 v%d, %d, v%d" % (t2, PPB - 1, vL))
        g("v_xor_b32 v%d, v%d, v%d" % (t2, t2, t1))
        g("v_lshlrev_b32 v%d, 4, v%d" % (t2, t2))
        g("v_mul_lo_u32 v%d, v%d, s%d" % (t0, t0, S_T1))
        g("v_add3_u32 v%d, v%d, v%d, s%d" % (vBs[q], t0, t2, S_T0))
    if split:
        DB = c.DB
        vBw = g.valloc(1)
        g("v_mul_u32_u24 v%d, %d, v%d" % (t0, nB * 1024, vW))
        g("v_lshl_add_u32 v%d, v%d, 4, v%d" % (vBw, vL, t0))
        g("v_add_u32 v%d, %d, v%d" % (vBw, LDS_B0, vBw))
        vBr = [[g.valloc(4, 2) for _ in range(nB)] for _ in range(DB)]
        xblk = g.valloc(56, 2)
        vTab = [[xblk + 2 * (h * nB + q) for q in range(nB)] for h in range(2)]
        vX = [xblk + 4 * nB + 8 * q for q in range(nB)]
        vO = [[xblk + 12 * nB + 4 * (h * nB + q) for q in range(nB)] for h in range(2)]
    else:
        g("s_mul_i32 s%d, s%d, %d" % (S_M0A, S_W, len(vAs) * 1024))
        g("s_mul_i32 s%d, s%d, %d" % (S_M0B, S_W, nB * 1024))
        g("s_add_u32 s%d, s%d, %d" % (S_M0B, S_M0B, LDS_B0))
        g("s_mov_b32 s%d, 0" % S_SOA)
    g("s_mov_b32 s%d, 0" % S_SOB)
    g("s_waitcnt lgkmcnt(0)")
    if not split:
        mk_srd(g, SRD_A, *c.a_buf)
    mk_srd(g, SRD_B, *c.b_buf)
    if hasattr(c, 'e_buf'):
        mk_srd(g, SRD_E, *c.e_buf)
    pctx = {}

    def b_dma(st):
        sl = st % RSB
        for q in range(nB):
            g("s_add_u32 m0, s%d, %d" % (S_M0B, sl * BSZ + q * 1024))
            g("s_nop 0")
            g.vmem("buffer_load_dwordx4 v%d, s[%d:%d], s%d offen lds" % (vBs[q], SRD_B, SRD_B + 3, S_SOB), st)
        g("s_add_u32 s%d, s%d, %d" % (S_SOB, S_SOB, c.BK * c.ldb))

    def reg_slots(st):
        rs = st % DB
        out = []
        if 'noBl' in ABL:
            return out
        for q in range(nB):
            def f(q=q):
                g.vmem("buffer_load_dwordx4 %s, v%d, s[%d:%d], s%d offen" % (vr(vBr[rs][q], 4), vBs[q], SRD_B, SRD_B + 3, S_SOB), ("B", st))
                if q == nB - 1:
                    g("s_add_u32 s%d, s%d, %d" % (S_SOB, S_SOB, c.BK * c.ldb))
            out.append(f)
        return out

    def tab_read(st):
        for q in range(nB):
            g("ds_read_b64 %s, v%d" % (vr(vTab[st & 1][q], 2), vBrow[q]))
        for q in range(nB):
            g("v_add_u32 v%d, %d, v%d" % (vBrow[q], c.BK * 8, vBrow[q]))

    def write_body(st):
        rs = st % DB
        sl = st % RSB
        if 'noBw' in ABL:
            return
        for d in range(4):
            for q in range(nB):
                src = vBr[rs][q]
                g("v_lshlrev_b32 v%d, 16, v%d" % (vX[q] + 2 * d, src + d))
                g("v_and_b32 v%d, 0xffff0000, v%d" % (vX[q] + 2 * d + 1, src + d))
        for d in range(4):
            for q in range(nB):
                T = vTab[st & 1][q]
                for h in range(2):
                    g("v_fma_f32 v%d, v%d, v%d, v%d" % (vX[q] + 2 * d + h, vX[q] + 2 * d + h, T, T + 1))
        for d in range(4):
            for q in range(nB):
                g("v_cvt_pk_bf16_f32 v%d, v%d, v%d" % (vO[st & 1][q] + d, vX[q] + 2 * d, vX[q] + 2 * d + 1))
        for q in range(nB):
            g("ds_write_b128 v%d, %s offset:%d" % (vBw, vr(vO[st & 1][q], 4), sl * BSZ + q * 1024))

    def pf_issue():
        pv = g.valloc(1)
        pd = 160
        g.nvmax = max(g.nvmax, 168)
        g("v_subrev_u32 v%d, 256, v0" % pv)
        g("v_lshlrev_b32 v%d, 4, v%d" % (pv, pv))
        mk_srd(g, SRD_D, 'w_sp', 0, S_ * S_ * 2)
        mk_srd(g, SRD_F, 'w_out', 0, FH * D_ * 2)
        g("s_lshl_b32 s%d, s2, 15" % S_T0)
        g("s_mul_i32 s%d, s2, 3136" % S_T1)
        for k in range(8):
            g.vmem("buffer_load_dwordx4 %s, v%d, s[%d:%d], s%d offen" % (vr(pd + 4 * (k & 1), 4), pv, SRD_D, SRD_D + 3, S_T0), "PF")
            g("s_add_u32 s%d, s%d, 4096" % (S_T0, S_T0))
        g.vmem("buffer_load_dwordx4 %s, v%d, s[%d:%d], s%d offen" % (vr(pd, 4), pv, SRD_F, SRD_F + 3, S_T1), "PF")

    mk_srd(g, SRD_C, *c.c_buf)
    if hasattr(c, 'd_buf'):
        mk_srd(g, SRD_D, *c.d_buf)
    if split:
        stats_issue(g, c, pctx, xblk)
        for st in range(2):
            for f in reg_slots(st):
                f()
        stats_finish(g, c, pctx, LDS_T0)
        for st in range(2, DB):
            for f in reg_slots(st):
                f()
        tab_read(0)
        tab_read(1)
        epi_setup()
        g.wait_vm(("B", 0), "lgkmcnt(0)")
        write_body(0)
        tab_read(2)
        g.wait_vm(("B", 1))
        write_body(1)
        g("s_waitcnt lgkmcnt(0)")
        tab_read(3)
        g.wait_vm(("B", 2))
        interleave(g, lambda: write_body(2), reg_slots(DB) + reg_slots(DB + 1))
    elif fused:
        for st in range(min(RSA, nst)):
            b_dma(st)
        epi_setup()
        g("s_barrier")
        for st in range(min(RSA, nst)):
            a_dma(vAs, st)
        g.wait_vm(1)
    else:
        for st in range(min(RSA, nst)):
            a_dma(vAs, st)
            b_dma(st)
        epi_setup()
        g.wait_vm(1)
    stamp(g, 1)
    save = g.L
    stage_txt = []
    for b in range(nst):
        g.L = []
        g("s_barrier")
        if split:
            if b + 3 < nst:
                g.wait_vm(("B", b + 3), "lgkmcnt(%d)" % (0 if 'noBw' in ABL else nB))
                if b + 4 < nst:
                    tab_read(b + 4)
                interleave(g, lambda: write_body(b + 3), reg_slots(b + 2 + DB) if b + 2 + DB < nst else [])
                g("s_waitcnt lgkmcnt(%d)" % ((0 if 'noBw' in ABL else nB) + (nB if b + 4 < nst else 0)))
            elif b + 2 < nst:
                g("s_waitcnt lgkmcnt(0)")
        else:
            if b >= 1 and b - 1 + RSA < nst:
                a_dma(vAs, b - 1 + RSA)
                b_dma(b - 1 + RSA)
            if b + 2 < nst:
                g.wait_vm(b + 2)
            if getattr(c, 'prefetch', False) and b - 1 + RSA == nst - 1:
                pf_issue()
        stage_txt.append(g.L)
    g.L = save
    U = lcm(lcm(RSB, DB), 2) if split else RSA
    g.collapse(stage_txt, U, name + "_p", S_CNT)
    stamp(g, 2)
    g("s_barrier")
    g("s_branch %s_epi" % name)
    g.vm = []

    g.lab("%s_cons" % name)
    g.nv = common_nv
    if os.environ.get('CPRIO'):
        g("s_setprio %s" % os.environ['CPRIO'])
    if fused:
        g("s_cmp_lg_u32 s%d, 0" % S_W)
        g("s_cbranch_scc1 %s_nopoll" % name)
        g("s_mov_b64 s[60:61], exec")
        g("s_mov_b64 exec, 1")
        g("v_mov_b32 v%d, s%d" % (t0, S_T2))
        g("v_mov_b32 v%d, 1" % t1)
        g("global_atomic_add v%d, v%d, s[44:45]" % (t0, t1))
        g("s_mov_b32 s%d, 0x100000" % S_CNT)
        g.lab("%s_poll" % name)
        g("global_load_dword v%d, v%d, s[44:45] sc1" % (t2, t0))
        g("s_waitcnt vmcnt(0)")
        g("v_readfirstlane_b32 s%d, v%d" % (S_T0, t2))
        g("s_sub_u32 s%d, s%d, 1" % (S_CNT, S_CNT))
        g("s_cmp_eq_u32 s%d, 0" % S_CNT)
        g("s_cbranch_scc1 %s_polled" % name)
        g("s_cmp_ge_u32 s%d, 14" % S_T0)
        g("s_cbranch_scc1 %s_polled" % name)
        g("s_sleep 1")
        g("s_branch %s_poll" % name)
        g.lab("%s_polled" % name)
        g("buffer_inv sc1")
        g("s_waitcnt vmcnt(0)")
        g("s_mov_b64 exec, s[60:61]")
        g.lab("%s_nopoll" % name)
    vWm = g.valloc(1); vWn = g.valloc(1)
    g("v_lshrrev_b32 v%d, %d, v%d" % (vWm, log2(wpn), vW))
    g("v_and_b32 v%d, %d, v%d" % (vWn, wpn - 1, vW))
    PD = c.PD
    NBUF = PD + 1
    blk = g.valloc(16 * mi * nj + NBUF * 4 * (mi + nj), 4)
    acc = [[blk + 16 * (i * nj + j) for j in range(nj)] for i in range(mi)]
    fb0 = blk + 16 * mi * nj
    fA = [[fb0 + 4 * (b * mi + i) for i in range(mi)] for b in range(NBUF)]
    fB = [[fb0 + 4 * NBUF * mi + 4 * (b * nj + j) for j in range(nj)] for b in range(NBUF)]
    ectx = {}
    g("s_waitcnt lgkmcnt(0)")
    mk_srd(g, SRD_C, *c.c_buf)
    if hasattr(c, 'd_buf'):
        mk_srd(g, SRD_D, *c.d_buf)
    if hasattr(c, 'e_buf'):
        mk_srd(g, SRD_E, *c.e_buf)
    if c.ln:
        stats_issue(g, c, ectx, blk)
    epi_setup()

    vAf = g.valloc(1)
    g("v_and_b32 v%d, 31, v%d" % (t0, vL))
    g("v_mul_u32_u24 v%d, %d, v%d" % (t1, c.WM, vWm))
    g("v_add_u32 v%d, v%d, v%d" % (t0, t0, t1))
    vXw = g.valloc(1)
    g("v_mul_u32_u24 v%d, %d, v%d" % (vXw, ERS, t0))
    g("v_mul_u32_u24 v%d, %d, v%d" % (t2, c.WN * 4, vWn))
    g("v_add_u32 v%d, v%d, v%d" % (vXw, vXw, t2))
    g("v_lshrrev_b32 v%d, 5, v%d" % (t2, vL))
    g("v_lshl_add_u32 v%d, v%d, 4, v%d" % (vXw, t2, vXw))
    if PPA == 8:
        g("v_bfe_u32 v%d, v%d, 1, 3" % (t1, t0))
    else:
        g("v_and_b32 v%d, 15, v%d" % (t1, t0))
    g("v_lshrrev_b32 v%d, 5, v%d" % (t2, vL))
    g("v_xor_b32 v%d, v%d, v%d" % (t2, t2, t1))
    g("v_lshlrev_b32 v%d, 4, v%d" % (t2, t2))
    g("v_lshlrev_b32 v%d, %d, v%d" % (t0, log2(RA), t0))
    g("v_add_u32 v%d, v%d, v%d" % (vAf, t0, t2))
    vBf = g.valloc(1)
    g("v_lshrrev_b32 v%d, 5, v%d" % (t0, vL))
    g("v_lshlrev_b32 v%d, 3, v%d" % (t0, t0))
    g("v_bfe_u32 v%d, v%d, 2, 2" % (t1, vL))
    g("v_add_u32 v%d, v%d, v%d" % (t0, t0, t1))
    if PPB == 8:
        g("v_lshrrev_b32 v%d, 1, v%d" % (t1, t1))
    g("v_lshlrev_b32 v%d, 2, v%d" % (t1, t1))
    g("v_mul_u32_u24 v%d, %d, v%d" % (t2, c.WN // 8, vWn))
    g("v_bfe_u32 v%d, v%d, 4, 1" % (t3, vL))
    g("v_lshl_add_u32 v%d, v%d, 1, v%d" % (t2, t3, t2))
    g("v_bfe_u32 v%d, v%d, 1, 1" % (t3, vL))
    g("v_add_u32 v%d, v%d, v%d" % (t2, t2, t3))
    g("v_xor_b32 v%d, v%d, v%d" % (t2, t2, t1))
    g("v_lshlrev_b32 v%d, 4, v%d" % (t2, t2))
    g("v_lshlrev_b32 v%d, %d, v%d" % (t0, log2(RB), t0))
    g("v_add_u32 v%d, v%d, v%d" % (t0, t0, t2))
    g("v_and_b32 v%d, 1, v%d" % (t3, vL))
    g("v_lshl_add_u32 v%d, v%d, 3, v%d" % (vBf, t3, t0))
    g("v_add_u32 v%d, %d, v%d" % (vBf, LDS_B0, vBf))
    vAfs = [[g.valloc(1) for _ in range(nks)] for _ in range(RSA)]
    vBfs = [[g.valloc(1) for _ in range(nj)] for _ in range(RSB)]
    for sl in range(RSA):
        for ks in range(nks):
            g("v_xor_b32 v%d, %d, v%d" % (vAfs[sl][ks], ks * 32, vAf))
            if sl:
                g("v_add_u32 v%d, %d, v%d" % (vAfs[sl][ks], sl * ASZ, vAfs[sl][ks]))
    for sl in range(RSB):
        for j in range(nj):
            g("v_xor_b32 v%d, %d, v%d" % (vBfs[sl][j], j * 64, vBf))
            if sl:
                g("v_add_u32 v%d, %d, v%d" % (vBfs[sl][j], sl * BSZ, vBfs[sl][j]))
    if c.ln:
        stats_finish(g, c, ectx, LDS_T0)
    for i in range(mi):
        for j in range(nj):
            for r in range(16):
                g("v_mov_b32 v%d, 0" % (acc[i][j] + r))
    if fused:
        g("s_barrier")

    def frag_reads(st, ks, buf):
        sl = st % RSB
        sa = st % RSA
        if 'noread' in ABL:
            return
        for j in range(nj):
            for h in range(2):
                g("ds_read_b64_tr_b16 %s, v%d offset:%d" % (vr(fB[buf][j] + 2 * h, 2), vBfs[sl][j], (ks * 16 + 4 * h) * RB))
        for i in range(mi):
            g("ds_read_b128 %s, v%d offset:%d" % (vr(fA[buf][i], 4), vAfs[sa][ks], i * 32 * RA))

    stamp(g, 1)
    save = g.L
    stage_txt = []
    step = 0
    nsteps = nst * nks
    nfr = mi + 2 * nj
    assert PD * nfr <= 15 and PD <= nks
    for st in range(nst):
        g.L = []
        g("s_barrier")
        if st == 0:
            for k in range(PD):
                frag_reads(k // nks, k % nks, k % NBUF)
        for ks in range(nks):
            k = step + PD
            if k < nsteps:
                frag_reads(k // nks, k % nks, k % NBUF)
            outstanding = min(PD, nsteps - 1 - step) * nfr
            if 'noread' in ABL:
                outstanding = 0
            g("s_waitcnt lgkmcnt(%d)" % outstanding)
            b = step % NBUF
            for i in range(mi):
                for j in range(nj):
                    if 'nomfma' in ABL:
                        continue
                    g("v_mfma_f32_32x32x16_bf16 %s, %s, %s, %s" % (
                        vr(acc[i][j], 16), vr(fB[b][j], 4), vr(fA[b][i], 4), vr(acc[i][j], 16)))
            step += 1
        stage_txt.append(g.L)
    g.L = save
    U0 = lcm(RSA, RSB)
    U = U0
    while (U * nks) % NBUF:
        U += U0
    g.collapse(stage_txt, U, name + "_c", S_CNT)
    g("s_barrier")
    g.nop(12)
    stamp(g, 2)
    for i in range(mi):
        for j in range(nj):
            for q in range(4):
                g("ds_write_b128 v%d, %s offset:%d" % (vXw, vr(acc[i][j] + 4 * q, 4), i * 32 * ERS + (j * 32 + q * 8) * 4))

    g.lab("%s_epi" % name)
    g.nv = common_nv
    g("s_waitcnt %slgkmcnt(0)" % ("vmcnt(0) " if c.ln else ""))
    g("s_barrier")
    X = [g.valloc(8, 4) for _ in range(NPASS)]
    for p in range(NPASS):
        for h in range(2):
            g("ds_read_b128 %s, v%d offset:%d" % (vr(X[p] + 4 * h, 4), E['la'], p * RPP * ERS + 16 * h))
    c.epi(g, c, E, X, NPASS, RPP)
    nxt = getattr(c, 'next', None)
    if nxt is not None:
        stamp(g, 3)
        g("s_waitcnt vmcnt(0)")
        g("s_barrier")
        g.vm = []
        g("s_lshl_b32 s%d, s%d, 2" % (S_T2, S_TM))
        g("s_lshl_b32 s%d, s%d, 1" % (S_TM, S_TM))
        g("s_cmp_ge_u32 s%d, 7" % S_TN)
        g("s_cselect_b32 s%d, 1, 0" % S_T0)
        g("s_add_u32 s%d, s%d, s%d" % (S_TM, S_TM, S_T0))
        g("s_mul_i32 s%d, s%d, 7" % (S_T0, S_T0))
        g("s_sub_u32 s%d, s%d, s%d" % (S_TN, S_TN, S_T0))
        nxt.kid = c.kid
        g.phase2 = True
        gen_kernel(nxt, g)
        c.lds = max(c.lds, nxt.lds)
        g.lab("%s_end" % name)
        g("s_endpgm")
        c.nvgpr = g.nvmax
        return g
    if fused:
        stamp(g, 5)
        if STAMP:
            g("s_waitcnt vmcnt(0)")
        stamp(g, 6)
        stamp_flush(g, c, 7)
        g("s_endpgm")
        return g
    stamp(g, 3)
    if STAMP:
        g("s_waitcnt vmcnt(0)")
    stamp(g, 4)
    stamp_flush(g, c, 5)
    g.lab("%s_end" % name)
    g("s_endpgm")
    if getattr(c, 'prefetch', False):
        g.lab("%s_pf" % name)
        g("s_load_dwordx16 s[32:47], s[0:1], 0")
        g("s_lshl_b32 s%d, s2, 15" % S_SOA)
        g("s_mul_i32 s%d, s2, 3136" % S_SOB)
        g("v_lshlrev_b32 v1, 4, v0")
        g("s_waitcnt lgkmcnt(0)")
        mk_srd(g, SRD_A, 'w_sp', 0, S_ * S_ * 2)
        mk_srd(g, SRD_B, 'w_out', 0, FH * D_ * 2)
        g("buffer_load_dwordx4 v[68:71], v1, s[%d:%d], s%d offen" % (SRD_B, SRD_B + 3, S_SOB))
        for k in range(4):
            g("buffer_load_dwordx4 v[%d:%d], v1, s[%d:%d], s%d offen" % (4 + 4 * k, 7 + 4 * k, SRD_A, SRD_A + 3, S_SOA))
            g("s_add_u32 s%d, s%d, 8192" % (S_SOA, S_SOA))
        g("s_endpgm")
    c.nvgpr = g.nvmax
    return g


def stats_issue(g, c, ctx, alias):
    v1 = alias
    vS = [v1, v1 + 28]
    ctx['vS'] = vS
    t = g.valloc(1)
    ctx['vSoff'] = t
    g("v_lshlrev_b32 v%d, 4, v0" % t)
    for r in range(2):
        for j in range(7):
            off = (j * 2048 + r * 1024) * 8
            g("s_mov_b32 s%d, %d" % (S_T0, off))
            g.vmem("buffer_load_dwordx4 %s, v%d, s[%d:%d], s%d offen" % (vr(vS[r] + j * 4, 4), t, SRD_E, SRD_E + 3, S_T0), ("S", 0))


def stats_finish(g, c, ctx, LDS_T0):
    vS = ctx['vS']
    t = ctx['vSoff']
    nv0 = g.nv
    H = [(r, h) for r in range(2) for h in range(2)]
    a = {k: g.valloc(1) for k in H}; b = {k: g.valloc(1) for k in H}
    dsb = g.valloc(8, 2)
    d = {k: dsb + n for n, k in enumerate(H)}; s = {k: dsb + 4 + n for n, k in enumerate(H)}
    o = [dsb, dsb + 4]
    c128 = g.valloc(1)
    g("v_mov_b32 v%d, 0x%x" % (c128, f2u(128.0)))
    g("v_add_u32 v%d, %d, v%d" % (t, LDS_T0, t))
    g.wait_vm(("S", 0))
    def M(j, k): return vS[k[0]] + 4 * j + 2 * k[1]
    def Q(j, k): return vS[k[0]] + 4 * j + 2 * k[1] + 1
    for k in H:
        g("v_add_f32 v%d, v%d, v%d" % (a[k], M(0, k), M(1, k)))
        g("v_add_f32 v%d, v%d, v%d" % (b[k], Q(0, k), Q(1, k)))
    for j in range(2, 7):
        for k in H:
            g("v_add_f32 v%d, v%d, v%d" % (a[k], a[k], M(j, k)))
            g("v_add_f32 v%d, v%d, v%d" % (b[k], b[k], Q(j, k)))
    for k in H:
        g("v_mul_f32 v%d, 0x%x, v%d" % (a[k], f2u(1.0 / 7.0), a[k]))
        g("v_mov_b32 v%d, 0" % s[k])
    for j in range(7):
        for k in H:
            g("v_sub_f32 v%d, v%d, v%d" % (d[k], M(j, k), a[k]))
        for k in H:
            g("v_fmac_f32 v%d, v%d, v%d" % (s[k], d[k], d[k]))
    for k in H:
        g("v_fmac_f32 v%d, v%d, v%d" % (b[k], s[k], c128))
    for k in H:
        g("v_mul_f32 v%d, 0x%x, v%d" % (b[k], f2u(1.0 / 896.0), b[k]))
    for k in H:
        g("v_cvt_pk_bf16_f32 v%d, v%d, v%d" % (d[k], a[k], b[k]))
    for k in H:
        g("v_lshlrev_b32 v%d, 16, v%d" % (a[k], d[k]))
        g("v_and_b32 v%d, 0xffff0000, v%d" % (b[k], d[k]))
    for k in H:
        g("v_add_f32 v%d, 0x%x, v%d" % (b[k], f2u(1e-5), b[k]))
    for k in H:
        g("v_cvt_pk_bf16_f32 v%d, v%d, v%d" % (b[k], b[k], b[k]))
    for k in H:
        g("v_lshlrev_b32 v%d, 16, v%d" % (b[k], b[k]))
    for k in H:
        g("v_sqrt_f32 v%d, v%d" % (b[k], b[k]))
    for k in H:
        g("v_cvt_pk_bf16_f32 v%d, v%d, v%d" % (b[k], b[k], b[k]))
    for k in H:
        g("v_lshlrev_b32 v%d, 16, v%d" % (b[k], b[k]))
    for k in H:
        g("v_rcp_f32 v%d, v%d" % (o[k[0]] + 2 * k[1], b[k]))
    for k in H:
        g("v_mul_f32 v%d, v%d, v%d" % (o[k[0]] + 2 * k[1] + 1, a[k], o[k[0]] + 2 * k[1]))
    for k in H:
        g("v_sub_f32 v%d, 0, v%d" % (o[k[0]] + 2 * k[1] + 1, o[k[0]] + 2 * k[1] + 1))
    for r in range(2):
        g("ds_write_b128 v%d, %s offset:%d" % (t, vr(o[r], 4), r * 1024 * 8))
    g("s_waitcnt lgkmcnt(0)")
    g("s_barrier")
    g.nv = nv0


def unpack8(g, dst, src):
    for d in range(4):
        g("v_lshlrev_b32 v%d, 16, v%d" % (dst + 2 * d, src + d))
        g("v_and_b32 v%d, 0xffff0000, v%d" % (dst + 2 * d + 1, src + d))


def pack8(g, dst, src):
    for d in range(4):
        g("v_cvt_pk_bf16_f32 v%d, v%d, v%d" % (dst + d, src + 2 * d, src + 2 * d + 1))


def store_pass(g, c, E, P, p, RPP):
    g("s_mov_b32 s%d, %d" % (S_T0, p * RPP * c.ldc))
    g.vmem("buffer_store_dwordx4 %s, v%d, s[%d:%d], s%d offen %s" % (vr(P, 4), E['co'], SRD_C, SRD_C + 3, S_T0, os.environ.get('STF', 'sc1')), ("ST", 0))


def regs_none(g, c, E, NPASS):
    pass


def pre_none(g, c, E, NPASS, RPP, T):
    pass


def dpp_sum16(g, dst, tmp):
    for pat in ("quad_perm:[1,0,3,2]", "quad_perm:[2,3,0,1]", "row_half_mirror", "row_mirror"):
        g("s_nop 1")
        g("v_add_f32_dpp v%d, v%d, v%d %s row_mask:0xf bank_mask:0xf" % (dst, dst, dst, pat))


def regs_k1(g, c, E, NPASS):
    E['sa'] = g.valloc(1)


def pre_k1(g, c, E, NPASS, RPP, T):
    t0, t1, t2, t3 = T
    g("s_sub_u32 s%d, s%d, 7" % (S_T0, S_TN))
    g("s_lshl_b32 s%d, s%d, 11" % (S_T0, S_T0))
    g("v_add_u32 v%d, s%d, v%d" % (t2, S_T0, t1))
    g("v_lshlrev_b32 v%d, 3, v%d" % (E['sa'], t2))


def epi_k1(g, c, E, X, NPASS, RPP):
    K1c = g.valloc(2, 2); K2c = g.valloc(2, 2)
    k1 = -2.0 * 0.7978845608028654 * 1.4426950408889634
    k2 = k1 * 0.044715
    for h in range(2):
        g("v_mov_b32 v%d, 0x%x" % (K1c + h, f2u(k1)))
        g("v_mov_b32 v%d, 0x%x" % (K2c + h, f2u(k2)))
    T = [g.valloc(8, 2) for _ in range(2)]
    P = [g.valloc(4, 4) for _ in range(NPASS)]
    g("s_waitcnt lgkmcnt(0)")
    for p0 in range(0, NPASS, 2):
        ps = [p0, p0 + 1]
        for p in ps:
            pack8(g, P[p], X[p])
        for p in ps:
            unpack8(g, X[p], P[p])
        for p in ps:
            for d in range(4):
                g("v_pk_mul_f32 %s, %s, %s" % (vr(T[p & 1] + 2 * d, 2), vr(X[p] + 2 * d, 2), vr(X[p] + 2 * d, 2)))
        for p in ps:
            for d in range(4):
                g("v_pk_fma_f32 %s, %s, %s, %s" % (vr(T[p & 1] + 2 * d, 2), vr(T[p & 1] + 2 * d, 2), vr(K2c, 2), vr(K1c, 2)))
        for p in ps:
            for d in range(4):
                g("v_pk_mul_f32 %s, %s, %s" % (vr(T[p & 1] + 2 * d, 2), vr(T[p & 1] + 2 * d, 2), vr(X[p] + 2 * d, 2)))
        for p in ps:
            for r in range(8):
                g("v_exp_f32 v%d, v%d" % (T[p & 1] + r, T[p & 1] + r))
        for p in ps:
            for r in range(8):
                g("v_add_f32 v%d, 1.0, v%d" % (T[p & 1] + r, T[p & 1] + r))
        for p in ps:
            for r in range(8):
                g("v_rcp_f32 v%d, v%d" % (T[p & 1] + r, T[p & 1] + r))
        for p in ps:
            for d in range(4):
                g("v_pk_mul_f32 %s, %s, %s" % (vr(T[p & 1] + 2 * d, 2), vr(T[p & 1] + 2 * d, 2), vr(X[p] + 2 * d, 2)))
        for p in ps:
            pack8(g, P[p], T[p & 1])
        for p in ps:
            store_pass(g, c, E, P[p], p, RPP)
    g("s_cmp_lt_u32 s%d, 7" % S_TN)
    g("s_cbranch_scc1 %s_nostats" % c.name)
    for p in range(NPASS):
        unpack8(g, X[p], P[p])
    S = [g.valloc(2, 2) for _ in range(NPASS)]
    MN = [g.valloc(2, 2) for _ in range(NPASS)]
    O = [g.valloc(2, 2) for _ in range(NPASS)]
    for p in range(NPASS):
        g("v_pk_add_f32 %s, %s, %s" % (vr(S[p], 2), vr(X[p], 2), vr(X[p] + 2, 2)))
    for d in range(2, 4):
        for p in range(NPASS):
            g("v_pk_add_f32 %s, %s, %s" % (vr(S[p], 2), vr(S[p], 2), vr(X[p] + 2 * d, 2)))
    for p in range(NPASS):
        g("v_add_f32 v%d, v%d, v%d" % (O[p], S[p], S[p] + 1))
    for pat in ("quad_perm:[1,0,3,2]", "quad_perm:[2,3,0,1]", "row_half_mirror", "row_mirror"):
        g("s_nop 1")
        for p in range(NPASS):
            g("v_add_f32_dpp v%d, v%d, v%d %s row_mask:0xf bank_mask:0xf" % (O[p], O[p], O[p], pat))
    for p in range(NPASS):
        g("v_mul_f32 v%d, 0x%x, v%d" % (O[p], f2u(1.0 / 128.0), O[p]))
    for p in range(NPASS):
        g("v_sub_f32 v%d, 0, v%d" % (MN[p], O[p]))
        g("v_sub_f32 v%d, 0, v%d" % (MN[p] + 1, O[p]))
    for d in range(4):
        for p in range(NPASS):
            g("v_pk_add_f32 %s, %s, %s" % (vr(X[p] + 2 * d, 2), vr(X[p] + 2 * d, 2), vr(MN[p], 2)))
    for p in range(NPASS):
        g("v_pk_mul_f32 %s, %s, %s" % (vr(S[p], 2), vr(X[p], 2), vr(X[p], 2)))
    for d in range(1, 4):
        for p in range(NPASS):
            g("v_pk_fma_f32 %s, %s, %s, %s" % (vr(S[p], 2), vr(X[p] + 2 * d, 2), vr(X[p] + 2 * d, 2), vr(S[p], 2)))
    for p in range(NPASS):
        g("v_add_f32 v%d, v%d, v%d" % (O[p] + 1, S[p], S[p] + 1))
    for pat in ("quad_perm:[1,0,3,2]", "quad_perm:[2,3,0,1]", "row_half_mirror", "row_mirror"):
        g("s_nop 1")
        for p in range(NPASS):
            g("v_add_f32_dpp v%d, v%d, v%d %s row_mask:0xf bank_mask:0xf" % (O[p] + 1, O[p] + 1, O[p] + 1, pat))
    t = g.valloc(1)
    g("v_and_b32 v%d, 15, v0" % t)
    g("v_cmp_eq_u32 vcc, 0, v%d" % t)
    g("s_and_saveexec_b64 s[60:61], vcc")
    for p in range(NPASS):
        g.vmem("buffer_store_dwordx2 %s, v%d, s[%d:%d], 0 offen offset:%d" % (vr(O[p], 2), E['sa'], SRD_E, SRD_E + 3, p * RPP * 8), ("ST", 0))
    g("s_mov_b64 exec, s[60:61]")
    g.lab("%s_nostats" % c.name)


def regs_k2(g, c, E, NPASS):
    E['z'] = [g.valloc(4, 2) for _ in range(NPASS)]
    E['b'] = [g.valloc(1) for _ in range(NPASS)]


def pre_k2(g, c, E, NPASS, RPP, T):
    t0, t1, t2, t3 = T
    g("s_mov_b32 s%d, %d" % (S_T1, F_ * 2))
    g("v_mul_lo_u32 v%d, v%d, s%d" % (t2, t1, S_T1))
    g("v_lshl_add_u32 v%d, v%d, 4, v%d" % (t2, t0, t2))
    g("s_mul_i32 s%d, s%d, %d" % (S_T0, S_TN, c.BN * 2))
    g("v_add_u32 v%d, s%d, v%d" % (t2, S_T0, t2))
    for p in range(NPASS):
        g("s_mov_b32 s%d, %d" % (S_T0, p * RPP * F_ * 2))
        g.vmem("buffer_load_dwordx4 %s, v%d, s[%d:%d], s%d offen" % (vr(E['z'][p], 4), t2, SRD_D, SRD_D + 3, S_T0), ("Z", 0))
    mk_srd(g, SRD_F, 'b_sp', 0, S_ * 2)
    g("v_lshlrev_b32 v%d, 1, v%d" % (t3, t1))
    for p in range(NPASS):
        g.vmem("buffer_load_ushort v%d, v%d, s[%d:%d], 0 offen offset:%d" % (E['b'][p], t3, SRD_F, SRD_F + 3, p * RPP * 2), ("Z", 0))


def epi_k2(g, c, E, X, NPASS, RPP):
    Y = [g.valloc(8, 2) for _ in range(NPASS)]
    B2 = [g.valloc(2, 2) for _ in range(NPASS)]
    P = [g.valloc(4, 4) for _ in range(NPASS)]
    PS = range(NPASS)
    for p in PS:
        g("v_lshlrev_b32 v%d, 16, v%d" % (B2[p], E['b'][p]))
        g("v_lshlrev_b32 v%d, 16, v%d" % (B2[p] + 1, E['b'][p]))
        unpack8(g, Y[p], E['z'][p])
    g("s_waitcnt lgkmcnt(0)")
    for p in PS:
        pack8(g, P[p], X[p])
    for p in PS:
        unpack8(g, X[p], P[p])
    for p in PS:
        for d in range(4):
            g("v_pk_add_f32 %s, %s, %s" % (vr(X[p] + 2 * d, 2), vr(X[p] + 2 * d, 2), vr(B2[p], 2)))
    for p in PS:
        pack8(g, P[p], X[p])
    for p in PS:
        unpack8(g, X[p], P[p])
    for p in PS:
        for d in range(4):
            g("v_pk_mul_f32 %s, %s, %s" % (vr(X[p] + 2 * d, 2), vr(X[p] + 2 * d, 2), vr(Y[p] + 2 * d, 2)))
    for p in PS:
        pack8(g, P[p], X[p])
    for p in PS:
        store_pass(g, c, E, P[p], p, RPP)


def epi_k3(g, c, E, X, NPASS, RPP):
    P = [g.valloc(4, 4) for _ in range(NPASS)]
    g("s_waitcnt lgkmcnt(0)")
    for p in range(NPASS):
        pack8(g, P[p], X[p])
    for p in range(NPASS):
        store_pass(g, c, E, P[p], p, RPP)


def main():
    k1 = Cfg()
    k1.name = "gemm1_kernel"; k1.K = D_; k1.BM = 128; k1.BN = 128; k1.BK = 64; k1.WM = 64; k1.WN = 64
    k1.mode = 'dma'; k1.slots = 5; k1.PD = 2; k1.lda = D_ * 2; k1.ldb = F_ * 2; k1.ldc = F_ * 2; k1.TM = 16; k1.TN = 14; k1.ln = False
    k1.a_buf = ('x', 0, S_ * D_ * 2); k1.b_buf = ('w_in', 0, D_ * F_ * 2); k1.c_buf = ('ws', WS_Z, S_ * F_ * 2)
    k1.e_buf = ('ws', WS_ST, 7 * 2048 * 8)
    k1.prefetch = not os.environ.get('NOPF'); k1.epi_regs = regs_k1; k1.epi_pre = pre_k1; k1.epi = epi_k1

    k2 = Cfg()
    k2.name = "gemm2_kernel"; k2.K = S_; k2.BM = 128; k2.BN = 64; k2.BK = 64; k2.WM = 32; k2.WN = 64
    k2.amode = os.environ.get('AMODE', 'dma'); k2.slots = int(os.environ.get('RSA', 6)); k2.nload = int(os.environ.get('NL', 2)); k2.DA = int(os.environ.get('DA', 6)); k2.DB = int(os.environ.get('DB', 6)); k2.PD = 3; k2.lda = S_ * 2; k2.ldb = F_ * 2; k2.ldc = FH * 2; k2.TM = 16; k2.TN = 14; k2.ln = True
    k2.b_col0 = FH
    k2.a_buf = ('w_sp', 0, S_ * S_ * 2); k2.b_buf = ('ws', WS_Z, S_ * F_ * 2); k2.c_buf = ('ws', WS_H, S_ * FH * 2)
    k2.d_buf = ('ws', WS_Z, S_ * F_ * 2); k2.e_buf = ('ws', WS_ST, 7 * 2048 * 8)
    k2.epi_regs = regs_k2; k2.epi_pre = pre_k2; k2.epi = epi_k2

    k3 = Cfg()
    k3.name = "gemm3_kernel"; k3.K = FH; k3.BM = 64; k3.BN = 64; k3.BK = 128; k3.WM = 32; k3.WN = 32
    k3.mode = 'dma'; k3.slots = 5; k3.PD = 5; k3.lda = FH * 2; k3.ldb = D_ * 2; k3.ldc = D_ * 2; k3.TM = 32; k3.TN = 7; k3.ln = False
    k3.a_buf = ('ws', WS_H, S_ * FH * 2); k3.b_buf = ('w_out', 0, FH * D_ * 2); k3.c_buf = ('out', 0, S_ * D_ * 2)
    k3.epi_regs = regs_none; k3.epi_pre = pre_none; k3.epi = epi_k3

    k2.next = k3
    ks = [k1, k2]
    for i, k in enumerate(ks):
        k.kid = i
    gs = [gen_kernel(k) for k in ks]
    out = []
    hdr = open("standalone__mixer_gmlp__prompt.s.ref").read().splitlines()
    for ln in hdr:
        if ln.startswith(";") and "@launch" not in ln:
            out.append(ln)
    for k in ks:
        out.append("; @launch kernel=%s grid=(%d,1,1) block=(%d,1,1) lds=%d" % (k.name, k.TM * k.TN + (32 if getattr(k, 'prefetch', False) else 0), 512 + 64 * (k.nload if k.ln else 0), k.lds))
    out.append('.amdgcn_target "amdgcn-amd-amdhsa--gfx950"')
    out.append(".text")
    for k, g in zip(ks, gs):
        out.append(".globl %s" % k.name)
        out.append(".p2align 8")
        out.append(".type %s,@function" % k.name)
        out += g.L
    out.append('.section .rodata,"a"')
    for k in ks:
        nv = max(k.nvgpr, 8)
        assert nv <= 256, (k.name, nv)
        ao = (nv + 3) // 4 * 4
        out.append(".p2align 6")
        out.append(".amdhsa_kernel %s" % k.name)
        out.append("  .amdhsa_next_free_vgpr %d" % nv)
        out.append("  .amdhsa_next_free_sgpr 96")
        out.append("  .amdhsa_accum_offset %d" % ao)
        out.append("  .amdhsa_group_segment_fixed_size 0")
        out.append("  .amdhsa_kernarg_size 64")
        out.append("  .amdhsa_user_sgpr_count 2")
        out.append("  .amdhsa_user_sgpr_kernarg_segment_ptr 1")
        out.append("  .amdhsa_system_sgpr_workgroup_id_x 1")
        out.append("  .amdhsa_float_denorm_mode_32 3")
        out.append(".end_amdhsa_kernel")
        sys.stderr.write("%s: vgpr=%d lds=%d\n" % (k.name, k.nvgpr, k.lds))
    open(sys.argv[1] if len(sys.argv) > 1 else "standalone__mixer_gmlp__prompt.s", "w").write("\n".join(out) + "\n")


main()
```

```python
import sys, struct, math, os
STAMP = os.environ.get('STAMP', '')
ABL = os.environ.get('ABL', '')

S_, D_, F_, FH = 2048, 448, 1792, 896
WS_Z = 0
WS_ST = 0x800000
WS_H = 0x900000


def f2u(x):
    return struct.unpack('<I', struct.pack('<f', x))[0]


def log2(x):
    l = x.bit_length() - 1
    assert 1 << l == x, x
    return l


def lcm(a, b):
    return a * b // math.gcd(a, b)


class G:
    def __init__(self):
        self.L = []
        self.vm = []
        self.nv = 0
        self.nvmax = 0

    def __call__(self, s):
        self.L.append("  " + s)

    def lab(self, s):
        self.L.append(s + ":")

    def nop(self, n):
        while n > 0:
            k = min(n, 16)
            self("s_nop %d" % (k - 1))
            n -= k

    def vmem(self, s, tag):
        self(s)
        self.vm.append(tag)

    def wait_vm(self, tag, extra=""):
        idx = -1
        for i, t in enumerate(self.vm):
            if t == tag:
                idx = i
        if idx < 0:
            if extra:
                self("s_waitcnt " + extra)
            return
        n = len(self.vm) - 1 - idx
        assert n <= 63
        self("s_waitcnt vmcnt(%d) %s" % (n, extra))
        self.vm = self.vm[idx + 1:]

    def valloc(self, n, align=1):
        self.nv = (self.nv + align - 1) // align * align
        r = self.nv
        self.nv += n
        self.nvmax = max(self.nvmax, self.nv)
        return r

    def collapse(self, stage_txt, U, name, cnt_sgpr):
        nst = len(stage_txt)
        grp = [sum(stage_txt[s0:s0 + U], []) for s0 in range(0, nst, U)]
        i = 0
        nloop = 0
        while i < len(grp):
            j = i
            while j + 1 < len(grp) and grp[j + 1] == grp[i]:
                j += 1
            cnt = j - i + 1
            if cnt >= 2:
                lab = "%s_loop%d" % (name, nloop)
                nloop += 1
                self("s_mov_b32 s%d, %d" % (cnt_sgpr, cnt))
                self.lab(lab)
                self.L += grp[i]
                self("s_sub_u32 s%d, s%d, 1" % (cnt_sgpr, cnt_sgpr))
                self("s_cmp_lg_u32 s%d, 0" % cnt_sgpr)
                self("s_cbranch_scc1 %s" % lab)
            else:
                self.L += grp[i]
            i = j + 1


def vr(b, n=1):
    return "v%d" % b if n == 1 else "v[%d:%d]" % (b, b + n - 1)


class Cfg:
    pass


SRD_A, SRD_B, SRD_C, SRD_D, SRD_E, SRD_F = 8, 12, 16, 20, 24, 28
S_TM, S_TN, S_W, S_SOA, S_SOB = 48, 49, 50, 51, 52
S_M0A, S_M0B, S_CNT, S_T0, S_T1, S_T2, S_T3 = 53, 54, 55, 56, 57, 58, 59
PTR = dict(x=32, w_in=34, w_sp=36, b_sp=38, w_out=40, out=42, dbg=44, ws=46)


def mk_srd(g, srd, ptr, off, nbytes):
    p = PTR[ptr]
    if off:
        g("s_add_u32 s%d, s%d, 0x%x" % (srd, p, off))
        g("s_addc_u32 s%d, s%d, 0" % (srd + 1, p + 1))
    else:
        g("s_mov_b32 s%d, s%d" % (srd, p))
        g("s_mov_b32 s%d, s%d" % (srd + 1, p + 1))
    g("s_and_b32 s%d, s%d, 0xffff" % (srd + 1, srd + 1))
    g("s_mov_b32 s%d, 0x%x" % (srd + 2, nbytes))
    g("s_mov_b32 s%d, 0x20000" % (srd + 3))


def stamp(g, k):
    if STAMP:
        g("s_memrealtime s[%d:%d]" % (64 + 2 * k, 65 + 2 * k))
        g("s_waitcnt lgkmcnt(0)")


def stamp_flush(g, c, n):
    if not STAMP:
        return
    g("s_and_b32 s%d, s%d, 3" % (S_T0, S_T3))
    g("s_cmp_lg_u32 s%d, 0" % S_T0)
    g("s_cbranch_scc1 %s_nostamp" % (c.name))
    mk_srd(g, 88, 'ws', 0x2000000 + c.kid * 0x10000, 0x10000)
    g("s_lshl_b32 s%d, s2, 7" % S_T0)
    g("s_lshl_b32 s%d, s%d, 4" % (S_T1, S_T3))
    g("s_add_u32 s%d, s%d, s%d" % (S_T0, S_T0, S_T1))
    g("v_mov_b32 v1, s%d" % S_T0)
    for k in range(n):
        g("v_mov_b32 v2, s%d" % (64 + 2 * k))
        g("buffer_store_dword v2, v1, s[88:91], 0 offen offset:%d" % (4 * k))
        g("s_nop 1")
    if os.environ.get('DBGOUT') and c.kid == 2:
        g("s_cmp_lg_u32 s2, 100")
        g("s_cbranch_scc1 %s_nostamp" % (c.name))
        g("s_cmp_lg_u32 s%d, 0" % S_T3)
        g("s_cbranch_scc1 %s_nostamp" % (c.name))
        g("s_waitcnt vmcnt(0)")
        mk_srd(g, 88, 'ws', 0x2000000, 0x30000)
        mk_srd(g, 92, 'dbg', 0, 256)
        g("v_and_b32 v3, 63, v0")
        g("v_cmp_gt_u32 vcc, 5, v3")
        g("s_and_saveexec_b64 s[60:61], vcc")
        g("v_lshlrev_b32 v3, 2, v3")
        for k in range(3):
            g("v_add_u32 v4, %d, v3" % (k * 0x10000 + 100 * 128))
            g("buffer_load_dword v5, v4, s[88:91], 0 offen sc1")
            g("s_waitcnt vmcnt(0)")
            g("buffer_store_dword v5, v3, s[92:95], 0 offen offset:%d" % (k * 20))
        g("s_mov_b64 exec, s[60:61]")
    g.lab("%s_nostamp" % (c.name))


def interleave(g, emit_main, slots):
    save = g.L
    g.L = []
    emit_main()
    main = g.L
    g.L = save
    n = len(slots)
    if n == 0:
        g.L += main
        return
    step = max(1, len(main) // n)
    pos = 0
    for k, sfn in enumerate(slots):
        sfn()
        end = len(main) if k == n - 1 else min(len(main), pos + step)
        g.L += main[pos:end]
        pos = end


def gen_kernel(c):
    g = G()
    name = c.name
    NP = 4
    RA = c.BK * 2
    RB = c.BN * 2
    PPA, PPB = RA // 16, RB // 16
    ASZ, BSZ = c.BM * RA, c.BK * RB
    nA = ASZ // 1024 // NP
    nB = BSZ // 1024 // NP
    mi, nj, nks = c.WM // 32, c.WN // 32, c.BK // 16
    wpn = c.BN // c.WN
    nst = c.K // c.BK
    RSA = c.slots
    RSB = 4 if c.ln else c.slots
    LDS_A0 = 0
    LDS_B0 = RSA * ASZ
    LDS_T0 = LDS_B0 + RSB * BSZ
    lds_total = LDS_T0 + (2048 * 8 if c.ln else 0)
    ERS = c.BN * 4 + 16
    lds_total = max(lds_total, c.BM * ERS)
    assert lds_total <= 160 * 1024, lds_total
    c.lds = lds_total
    CPR = c.BN // 8
    RPP = 512 // CPR
    NPASS = c.BM // RPP

    g.lab(name)
    if getattr(c, 'prefetch', False):
        g("s_cmp_ge_u32 s2, %d" % (c.TM * c.TN + 32))
        g("s_cbranch_scc1 %s_end" % name)
        g("s_cmp_ge_u32 s2, %d" % (c.TM * c.TN))
        g("s_cbranch_scc1 %s_pf" % name)
    else:
        g("s_cmp_ge_u32 s2, %d" % (c.TM * c.TN))
        g("s_cbranch_scc1 %s_end" % name)
    stamp(g, 0)
    g("s_load_dwordx16 s[32:47], s[0:1], 0")
    g("s_and_b32 s%d, s2, 7" % S_T0)
    g("s_lshr_b32 s%d, s2, 3" % S_T1)
    g("s_and_b32 s%d, s%d, 3" % (S_TM, S_T1))
    g("s_lshr_b32 s%d, s%d, 2" % (S_TN, S_T1))
    if c.TN == 14:
        g("s_lshr_b32 s%d, s%d, 1" % (S_T2, S_T0))
        g("s_lshl_b32 s%d, s%d, 2" % (S_T2, S_T2))
        g("s_add_u32 s%d, s%d, s%d" % (S_TM, S_TM, S_T2))
        g("s_and_b32 s%d, s%d, 1" % (S_T2, S_T0))
        g("s_mul_i32 s%d, s%d, 7" % (S_T2, S_T2))
        g("s_add_u32 s%d, s%d, s%d" % (S_TN, S_TN, S_T2))
    else:
        assert c.TN == 7
        g("s_lshl_b32 s%d, s%d, 2" % (S_T2, S_T0))
        g("s_add_u32 s%d, s%d, s%d" % (S_TM, S_TM, S_T2))
    g.nv = 1
    vL = g.valloc(1)
    vW = g.valloc(1)
    t0 = g.valloc(1); t1 = g.valloc(1); t2 = g.valloc(1); t3 = g.valloc(1)
    g("v_and_b32 v%d, 63, v0" % vL)
    g("v_lshrrev_b32 v%d, 6, v0" % vW)
    g("s_nop 0")
    g("v_readfirstlane_b32 s%d, v%d" % (S_W, vW))
    g("v_and_b32 v%d, 3, v%d" % (vW, vW))
    E = {}
    E['row'] = g.valloc(1)
    E['la'] = g.valloc(1)
    E['co'] = g.valloc(1)
    c.epi_regs(g, c, E, NPASS)
    g("s_mov_b32 s%d, s%d" % (S_T3, S_W))
    g("s_cmp_lt_u32 s%d, 4" % S_W)
    g("s_cbranch_scc1 %s_cons" % name)
    common_nv = g.nv

    def epi_setup():
        g("v_lshrrev_b32 v%d, %d, v0" % (E['row'], log2(CPR)))
        g("v_and_b32 v%d, %d, v0" % (t0, CPR - 1))
        g("v_mul_u32_u24 v%d, %d, v%d" % (t1, ERS, E['row']))
        g("v_lshl_add_u32 v%d, v%d, 5, v%d" % (E['la'], t0, t1))
        g("s_mul_i32 s%d, s%d, %d" % (S_T0, S_TM, c.BM))
        g("v_add_u32 v%d, s%d, v%d" % (t1, S_T0, E['row']))
        g("s_mov_b32 s%d, %d" % (S_T1, c.ldc))
        g("v_mul_lo_u32 v%d, v%d, s%d" % (t2, t1, S_T1))
        g("s_mul_i32 s%d, s%d, %d" % (S_T0, S_TN, c.BN * 2))
        g("v_lshl_add_u32 v%d, v%d, 4, v%d" % (t3, t0, t2))
        g("v_add_u32 v%d, s%d, v%d" % (E['co'], S_T0, t3))
        c.epi_pre(g, c, E, NPASS, RPP, (t0, t1, t2, t3))

    split = c.ln
    NL = c.nload if split else 0
    rpcA, rpcB = 1024 // RA, 1024 // RB

    def a_offsets(nw, vWx):
        n = ASZ // 1024 // nw
        vAs = [g.valloc(1) for _ in range(n)]
        g("s_mul_i32 s%d, s%d, %d" % (S_T0, S_TM, c.BM * c.lda))
        g("s_mov_b32 s%d, %d" % (S_T1, c.lda))
        for q in range(n):
            g("v_lshrrev_b32 v%d, %d, v%d" % (t0, log2(PPA), vL))
            g("v_mul_u32_u24 v%d, %d, v%d" % (t1, n * rpcA, vWx))
            g("v_add3_u32 v%d, v%d, v%d, %d" % (t0, t0, t1, q * rpcA))
            if PPA == 8:
                g("v_bfe_u32 v%d, v%d, 1, 3" % (t1, t0))
            else:
                assert PPA == 16
                g("v_and_b32 v%d, 15, v%d" % (t1, t0))
            g("v_and_b32 v%d, %d, v%d" % (t2, PPA - 1, vL))
            g("v_xor_b32 v%d, v%d, v%d" % (t2, t2, t1))
            g("v_lshlrev_b32 v%d, 4, v%d" % (t2, t2))
            g("v_mul_lo_u32 v%d, v%d, s%d" % (t0, t0, S_T1))
            g("v_add3_u32 v%d, v%d, v%d, s%d" % (vAs[q], t0, t2, S_T0))
        return vAs

    def a_dma(vAs, st):
        sl = st % RSA
        for q in range(len(vAs)):
            g("s_add_u32 m0, s%d, %d" % (S_M0A, LDS_A0 + sl * ASZ + q * 1024))
            g("s_nop 0")
            g.vmem("buffer_load_dwordx4 v%d, s[%d:%d], s%d offen lds" % (vAs[q], SRD_A, SRD_A + 3, S_SOA), st)
        g("s_add_u32 s%d, s%d, %d" % (S_SOA, S_SOA, c.BK * 2))

    if split:
        g("s_cmp_lt_u32 s%d, 8" % S_W)
        g("s_cbranch_scc1 %s_bw" % name)
        if c.amode == 'dma':
            g("s_sub_u32 s%d, s%d, 8" % (S_W, S_W))
            vAs = a_offsets(NL, vW)
            g("s_mul_i32 s%d, s%d, %d" % (S_M0A, S_W, len(vAs) * 1024))
            g("s_mov_b32 s%d, 0" % S_SOA)
            g("s_waitcnt lgkmcnt(0)")
            mk_srd(g, SRD_A, *c.a_buf)
            for st in range(2):
                a_dma(vAs, st)
            g("s_barrier")
            for st in range(2, min(RSA, nst)):
                a_dma(vAs, st)
            g.wait_vm(1)
            save = g.L
            stage_txt = []
            for b in range(nst):
                g.L = []
                g("s_barrier")
                if b >= 1 and b - 1 + RSA < nst:
                    a_dma(vAs, b - 1 + RSA)
                if b + 2 < nst:
                    g.wait_vm(b + 2)
                stage_txt.append(g.L)
            g.L = save
            g.collapse(stage_txt, RSA, name + "_l", S_CNT)
            g("s_endpgm")
            g.vm = []
        else:
            vAs = a_offsets(NL, vW)
            nAl = len(vAs)
            DA = c.DA
            vAw = g.valloc(1)
            g("v_mul_u32_u24 v%d, %d, v%d" % (t0, nAl * 1024, vW))
            g("v_lshl_add_u32 v%d, v%d, 4, v%d" % (vAw, vL, t0))
            vAr = [[g.valloc(4, 2) for _ in range(nAl)] for _ in range(DA)]
            g("s_mov_b32 s%d, 0" % S_SOA)
            g("s_waitcnt lgkmcnt(0)")
            mk_srd(g, SRD_A, *c.a_buf)

            def a_slots(st):
                rs = st % DA
                out = []
                if 'noAl' in ABL:
                    return out
                for q in range(nAl):
                    def f(q=q):
                        g.vmem("buffer_load_dwordx4 %s, v%d, s[%d:%d], s%d offen" % (vr(vAr[rs][q], 4), vAs[q], SRD_A, SRD_A + 3, S_SOA), st)
                        if q == nAl - 1:
                            g("s_add_u32 s%d, s%d, %d" % (S_SOA, S_SOA, c.BK * 2))
                    out.append(f)
                return out

            def a_write(st):
                if 'noAw' in ABL:
                    return
                for q in range(nAl):
                    g("ds_write_b128 v%d, %s offset:%d" % (vAw, vr(vAr[st % DA][q], 4), (st % RSA) * ASZ + q * 1024))

            for st in range(2):
                for f in a_slots(st):
                    f()
            g("s_barrier")
            for st in range(2, DA):
                for f in a_slots(st):
                    f()
            g.wait_vm(0)
            a_write(0)
            g.wait_vm(1)
            a_write(1)
            g("s_waitcnt lgkmcnt(0)")
            g.wait_vm(2)
            interleave(g, lambda: a_write(2), a_slots(DA) + a_slots(DA + 1))
            save = g.L
            stage_txt = []
            for b in range(nst):
                g.L = []
                g("s_barrier")
                if b + 3 < nst:
                    g.wait_vm(b + 3)
                    interleave(g, lambda: a_write(b + 3), a_slots(b + 2 + DA) if b + 2 + DA < nst else [])
                    g("s_waitcnt lgkmcnt(%d)" % (0 if 'noAw' in ABL else nAl))
                elif b + 2 < nst:
                    g("s_waitcnt lgkmcnt(0)")
                stage_txt.append(g.L)
            g.L = save
            g.collapse(stage_txt, lcm(RSA, DA), name + "_l", S_CNT)
            g("s_endpgm")
            g.vm = []
        g.lab("%s_bw" % name)
        g.nv = common_nv
        if os.environ.get('BPRIO'):
            g("s_setprio %s" % os.environ['BPRIO'])

    g("s_sub_u32 s%d, s%d, 4" % (S_W, S_W))
    if not split:
        vAs = a_offsets(NP, vW)
    vBs = [g.valloc(1) for _ in range(nB)]
    g("s_mul_i32 s%d, s%d, %d" % (S_T0, S_TN, c.BN * 2))
    if getattr(c, 'b_col0', 0):
        g("s_add_u32 s%d, s%d, %d" % (S_T0, S_T0, c.b_col0 * 2))
    g("s_mov_b32 s%d, %d" % (S_T1, c.ldb))
    vBrow = []
    for q in range(nB):
        g("v_lshrrev_b32 v%d, %d, v%d" % (t0, log2(PPB), vL))
        g("v_mul_u32_u24 v%d, %d, v%d" % (t1, nB * rpcB, vW))
        g("v_add3_u32 v%d, v%d, v%d, %d" % (t0, t0, t1, q * rpcB))
        if c.ln:
            r = g.valloc(1)
            vBrow.append(r)
            g("v_lshlrev_b32 v%d, 3, v%d" % (r, t0))
            g("v_add_u32 v%d, %d, v%d" % (r, LDS_T0, r))
        if PPB == 8:
            g("v_bfe_u32 v%d, v%d, 1, 1" % (t1, t0))
        else:
            assert PPB == 16
            g("v_and_b32 v%d, 3, v%d" % (t1, t0))
        g("v_lshlrev_b32 v%d, 2, v%d" % (t1, t1))
        g("v_and_b32 v%d, %d, v%d" % (t2, PPB - 1, vL))
        g("v_xor_b32 v%d, v%d, v%d" % (t2, t2, t1))
        g("v_lshlrev_b32 v%d, 4, v%d" % (t2, t2))
        g("v_mul_lo_u32 v%d, v%d, s%d" % (t0, t0, S_T1))
        g("v_add3_u32 v%d, v%d, v%d, s%d" % (vBs[q], t0, t2, S_T0))
    if split:
        DB = c.DB
        vBw = g.valloc(1)
        g("v_mul_u32_u24 v%d, %d, v%d" % (t0, nB * 1024, vW))
        g("v_lshl_add_u32 v%d, v%d, 4, v%d" % (vBw, vL, t0))
        g("v_add_u32 v%d, %d, v%d" % (vBw, LDS_B0, vBw))
        vBr = [[g.valloc(4, 2) for _ in range(nB)] for _ in range(DB)]
        xblk = g.valloc(56, 2)
        vTab = [[xblk + 2 * (h * nB + q) for q in range(nB)] for h in range(2)]
        vX = [xblk + 4 * nB + 8 * q for q in range(nB)]
        vO = [[xblk + 12 * nB + 4 * (h * nB + q) for q in range(nB)] for h in range(2)]
    else:
        g("s_mul_i32 s%d, s%d, %d" % (S_M0A, S_W, len(vAs) * 1024))
        g("s_mul_i32 s%d, s%d, %d" % (S_M0B, S_W, nB * 1024))
        g("s_add_u32 s%d, s%d, %d" % (S_M0B, S_M0B, LDS_B0))
        g("s_mov_b32 s%d, 0" % S_SOA)
    g("s_mov_b32 s%d, 0" % S_SOB)
    g("s_waitcnt lgkmcnt(0)")
    if not split:
        mk_srd(g, SRD_A, *c.a_buf)
    mk_srd(g, SRD_B, *c.b_buf)
    if hasattr(c, 'e_buf'):
        mk_srd(g, SRD_E, *c.e_buf)
    pctx = {}

    def b_dma(st):
        sl = st % RSB
        for q in range(nB):
            g("s_add_u32 m0, s%d, %d" % (S_M0B, sl * BSZ + q * 1024))
            g("s_nop 0")
            g.vmem("buffer_load_dwordx4 v%d, s[%d:%d], s%d offen lds" % (vBs[q], SRD_B, SRD_B + 3, S_SOB), st)
        g("s_add_u32 s%d, s%d, %d" % (S_SOB, S_SOB, c.BK * c.ldb))

    def reg_slots(st):
        rs = st % DB
        out = []
        if 'noBl' in ABL:
            return out
        for q in range(nB):
            def f(q=q):
                g.vmem("buffer_load_dwordx4 %s, v%d, s[%d:%d], s%d offen" % (vr(vBr[rs][q], 4), vBs[q], SRD_B, SRD_B + 3, S_SOB), ("B", st))
                if q == nB - 1:
                    g("s_add_u32 s%d, s%d, %d" % (S_SOB, S_SOB, c.BK * c.ldb))
            out.append(f)
        return out

    def tab_read(st):
        for q in range(nB):
            g("ds_read_b64 %s, v%d" % (vr(vTab[st & 1][q], 2), vBrow[q]))
        for q in range(nB):
            g("v_add_u32 v%d, %d, v%d" % (vBrow[q], c.BK * 8, vBrow[q]))

    def write_body(st):
        rs = st % DB
        sl = st % RSB
        if 'noBw' in ABL:
            return
        for d in range(4):
            for q in range(nB):
                src = vBr[rs][q]
                g("v_lshlrev_b32 v%d, 16, v%d" % (vX[q] + 2 * d, src + d))
                g("v_and_b32 v%d, 0xffff0000, v%d" % (vX[q] + 2 * d + 1, src + d))
        for d in range(4):
            for q in range(nB):
                T = vTab[st & 1][q]
                for h in range(2):
                    g("v_fma_f32 v%d, v%d, v%d, v%d" % (vX[q] + 2 * d + h, vX[q] + 2 * d + h, T, T + 1))
        for d in range(4):
            for q in range(nB):
                g("v_cvt_pk_bf16_f32 v%d, v%d, v%d" % (vO[st & 1][q] + d, vX[q] + 2 * d, vX[q] + 2 * d + 1))
        for q in range(nB):
            g("ds_write_b128 v%d, %s offset:%d" % (vBw, vr(vO[st & 1][q], 4), sl * BSZ + q * 1024))

    def pf_issue():
        pv = g.valloc(1)
        pd = 160
        g.nvmax = max(g.nvmax, 168)
        g("v_subrev_u32 v%d, 256, v0" % pv)
        g("v_lshlrev_b32 v%d, 4, v%d" % (pv, pv))
        mk_srd(g, SRD_D, 'w_sp', 0, S_ * S_ * 2)
        mk_srd(g, SRD_F, 'w_out', 0, FH * D_ * 2)
        g("s_lshl_b32 s%d, s2, 15" % S_T0)
        g("s_mul_i32 s%d, s2, 3136" % S_T1)
        for k in range(8):
            g.vmem("buffer_load_dwordx4 %s, v%d, s[%d:%d], s%d offen" % (vr(pd + 4 * (k & 1), 4), pv, SRD_D, SRD_D + 3, S_T0), "PF")
            g("s_add_u32 s%d, s%d, 4096" % (S_T0, S_T0))
        g.vmem("buffer_load_dwordx4 %s, v%d, s[%d:%d], s%d offen" % (vr(pd, 4), pv, SRD_F, SRD_F + 3, S_T1), "PF")

    mk_srd(g, SRD_C, *c.c_buf)
    if hasattr(c, 'd_buf'):
        mk_srd(g, SRD_D, *c.d_buf)
    if split:
        stats_issue(g, c, pctx, xblk)
        for st in range(2):
            for f in reg_slots(st):
                f()
        stats_finish(g, c, pctx, LDS_T0)
        for st in range(2, DB):
            for f in reg_slots(st):
                f()
        tab_read(0)
        tab_read(1)
        epi_setup()
        g.wait_vm(("B", 0), "lgkmcnt(0)")
        write_body(0)
        tab_read(2)
        g.wait_vm(("B", 1))
        write_body(1)
        g("s_waitcnt lgkmcnt(0)")
        tab_read(3)
        g.wait_vm(("B", 2))
        interleave(g, lambda: write_body(2), reg_slots(DB) + reg_slots(DB + 1))
    else:
        for st in range(min(RSA, nst)):
            a_dma(vAs, st)
            b_dma(st)
        epi_setup()
        g.wait_vm(1)
    stamp(g, 1)
    save = g.L
    stage_txt = []
    for b in range(nst):
        g.L = []
        g("s_barrier")
        if split:
            if b + 3 < nst:
                g.wait_vm(("B", b + 3), "lgkmcnt(%d)" % (0 if 'noBw' in ABL else nB))
                if b + 4 < nst:
                    tab_read(b + 4)
                interleave(g, lambda: write_body(b + 3), reg_slots(b + 2 + DB) if b + 2 + DB < nst else [])
                g("s_waitcnt lgkmcnt(%d)" % ((0 if 'noBw' in ABL else nB) + (nB if b + 4 < nst else 0)))
            elif b + 2 < nst:
                g("s_waitcnt lgkmcnt(0)")
        else:
            if b >= 1 and b - 1 + RSA < nst:
                a_dma(vAs, b - 1 + RSA)
                b_dma(b - 1 + RSA)
            if b + 2 < nst:
                g.wait_vm(b + 2)
            if getattr(c, 'prefetch', False) and b == nst - int(os.environ.get('PFB', 4)):
                pf_issue()
        stage_txt.append(g.L)
    g.L = save
    U = lcm(lcm(RSB, DB), 2) if split else RSA
    g.collapse(stage_txt, U, name + "_p", S_CNT)
    stamp(g, 2)
    g("s_barrier")
    g("s_branch %s_epi" % name)
    g.vm = []

    g.lab("%s_cons" % name)
    g.nv = common_nv
    if os.environ.get('CPRIO'):
        g("s_setprio %s" % os.environ['CPRIO'])
    vWm = g.valloc(1); vWn = g.valloc(1)
    g("v_lshrrev_b32 v%d, %d, v%d" % (vWm, log2(wpn), vW))
    g("v_and_b32 v%d, %d, v%d" % (vWn, wpn - 1, vW))
    PD = c.PD
    NBUF = PD + 1
    blk = g.valloc(16 * mi * nj + NBUF * 4 * (mi + nj), 4)
    acc = [[blk + 16 * (i * nj + j) for j in range(nj)] for i in range(mi)]
    fb0 = blk + 16 * mi * nj
    fA = [[fb0 + 4 * (b * mi + i) for i in range(mi)] for b in range(NBUF)]
    fB = [[fb0 + 4 * NBUF * mi + 4 * (b * nj + j) for j in range(nj)] for b in range(NBUF)]
    ectx = {}
    g("s_waitcnt lgkmcnt(0)")
    mk_srd(g, SRD_C, *c.c_buf)
    if hasattr(c, 'd_buf'):
        mk_srd(g, SRD_D, *c.d_buf)
    if hasattr(c, 'e_buf'):
        mk_srd(g, SRD_E, *c.e_buf)
    if c.ln:
        stats_issue(g, c, ectx, blk)
    epi_setup()

    vAf = g.valloc(1)
    g("v_and_b32 v%d, 31, v%d" % (t0, vL))
    g("v_mul_u32_u24 v%d, %d, v%d" % (t1, c.WM, vWm))
    g("v_add_u32 v%d, v%d, v%d" % (t0, t0, t1))
    vXw = g.valloc(1)
    g("v_mul_u32_u24 v%d, %d, v%d" % (vXw, ERS, t0))
    g("v_mul_u32_u24 v%d, %d, v%d" % (t2, c.WN * 4, vWn))
    g("v_add_u32 v%d, v%d, v%d" % (vXw, vXw, t2))
    g("v_lshrrev_b32 v%d, 5, v%d" % (t2, vL))
    g("v_lshl_add_u32 v%d, v%d, 4, v%d" % (vXw, t2, vXw))
    if PPA == 8:
        g("v_bfe_u32 v%d, v%d, 1, 3" % (t1, t0))
    else:
        g("v_and_b32 v%d, 15, v%d" % (t1, t0))
    g("v_lshrrev_b32 v%d, 5, v%d" % (t2, vL))
    g("v_xor_b32 v%d, v%d, v%d" % (t2, t2, t1))
    g("v_lshlrev_b32 v%d, 4, v%d" % (t2, t2))
    g("v_lshlrev_b32 v%d, %d, v%d" % (t0, log2(RA), t0))
    g("v_add_u32 v%d, v%d, v%d" % (vAf, t0, t2))
    vBf = g.valloc(1)
    g("v_lshrrev_b32 v%d, 5, v%d" % (t0, vL))
    g("v_lshlrev_b32 v%d, 3, v%d" % (t0, t0))
    g("v_bfe_u32 v%d, v%d, 2, 2" % (t1, vL))
    g("v_add_u32 v%d, v%d, v%d" % (t0, t0, t1))
    if PPB == 8:
        g("v_lshrrev_b32 v%d, 1, v%d" % (t1, t1))
    g("v_lshlrev_b32 v%d, 2, v%d" % (t1, t1))
    g("v_mul_u32_u24 v%d, %d, v%d" % (t2, c.WN // 8, vWn))
    g("v_bfe_u32 v%d, v%d, 4, 1" % (t3, vL))
    g("v_lshl_add_u32 v%d, v%d, 1, v%d" % (t2, t3, t2))
    g("v_bfe_u32 v%d, v%d, 1, 1" % (t3, vL))
    g("v_add_u32 v%d, v%d, v%d" % (t2, t2, t3))
    g("v_xor_b32 v%d, v%d, v%d" % (t2, t2, t1))
    g("v_lshlrev_b32 v%d, 4, v%d" % (t2, t2))
    g("v_lshlrev_b32 v%d, %d, v%d" % (t0, log2(RB), t0))
    g("v_add_u32 v%d, v%d, v%d" % (t0, t0, t2))
    g("v_and_b32 v%d, 1, v%d" % (t3, vL))
    g("v_lshl_add_u32 v%d, v%d, 3, v%d" % (vBf, t3, t0))
    g("v_add_u32 v%d, %d, v%d" % (vBf, LDS_B0, vBf))
    vAfs = [[g.valloc(1) for _ in range(nks)] for _ in range(RSA)]
    vBfs = [[g.valloc(1) for _ in range(nj)] for _ in range(RSB)]
    for sl in range(RSA):
        for ks in range(nks):
            g("v_xor_b32 v%d, %d, v%d" % (vAfs[sl][ks], ks * 32, vAf))
            if sl:
                g("v_add_u32 v%d, %d, v%d" % (vAfs[sl][ks], sl * ASZ, vAfs[sl][ks]))
    for sl in range(RSB):
        for j in range(nj):
            g("v_xor_b32 v%d, %d, v%d" % (vBfs[sl][j], j * 64, vBf))
            if sl:
                g("v_add_u32 v%d, %d, v%d" % (vBfs[sl][j], sl * BSZ, vBfs[sl][j]))
    if c.ln:
        stats_finish(g, c, ectx, LDS_T0)
    for i in range(mi):
        for j in range(nj):
            for r in range(16):
                g("v_mov_b32 v%d, 0" % (acc[i][j] + r))

    def frag_reads(st, ks, buf):
        sl = st % RSB
        sa = st % RSA
        if 'noread' in ABL:
            return
        for j in range(nj):
            for h in range(2):
                g("ds_read_b64_tr_b16 %s, v%d offset:%d" % (vr(fB[buf][j] + 2 * h, 2), vBfs[sl][j], (ks * 16 + 4 * h) * RB))
        for i in range(mi):
            g("ds_read_b128 %s, v%d offset:%d" % (vr(fA[buf][i], 4), vAfs[sa][ks], i * 32 * RA))

    stamp(g, 1)
    save = g.L
    stage_txt = []
    step = 0
    nsteps = nst * nks
    nfr = mi + 2 * nj
    assert PD * nfr <= 15 and PD <= nks
    for st in range(nst):
        g.L = []
        g("s_barrier")
        if st == 0:
            for k in range(PD):
                frag_reads(k // nks, k % nks, k % NBUF)
        for ks in range(nks):
            k = step + PD
            if k < nsteps:
                frag_reads(k // nks, k % nks, k % NBUF)
            outstanding = min(PD, nsteps - 1 - step) * nfr
            if 'noread' in ABL:
                outstanding = 0
            g("s_waitcnt lgkmcnt(%d)" % outstanding)
            b = step % NBUF
            for i in range(mi):
                for j in range(nj):
                    if 'nomfma' in ABL:
                        continue
                    g("v_mfma_f32_32x32x16_bf16 %s, %s, %s, %s" % (
                        vr(acc[i][j], 16), vr(fB[b][j], 4), vr(fA[b][i], 4), vr(acc[i][j], 16)))
            step += 1
        stage_txt.append(g.L)
    g.L = save
    U0 = lcm(RSA, RSB)
    U = U0
    while (U * nks) % NBUF:
        U += U0
    g.collapse(stage_txt, U, name + "_c", S_CNT)
    g("s_barrier")
    g.nop(12)
    stamp(g, 2)
    for i in range(mi):
        for j in range(nj):
            for q in range(4):
                g("ds_write_b128 v%d, %s offset:%d" % (vXw, vr(acc[i][j] + 4 * q, 4), i * 32 * ERS + (j * 32 + q * 8) * 4))

    g.lab("%s_epi" % name)
    g.nv = common_nv
    g("s_waitcnt %slgkmcnt(0)" % ("vmcnt(0) " if c.ln else ""))
    g("s_barrier")
    X = [g.valloc(8, 4) for _ in range(NPASS)]
    for p in range(NPASS):
        for h in range(2):
            g("ds_read_b128 %s, v%d offset:%d" % (vr(X[p] + 4 * h, 4), E['la'], p * RPP * ERS + 16 * h))
    c.epi(g, c, E, X, NPASS, RPP)
    stamp(g, 3)
    if STAMP:
        g("s_waitcnt vmcnt(0)")
    stamp(g, 4)
    stamp_flush(g, c, 5)
    g.lab("%s_end" % name)
    g("s_endpgm")
    if getattr(c, 'prefetch', False):
        g.lab("%s_pf" % name)
        g("s_load_dwordx16 s[32:47], s[0:1], 0")
        g("s_lshl_b32 s%d, s2, 15" % S_SOA)
        g("s_mul_i32 s%d, s2, 3136" % S_SOB)
        g("v_lshlrev_b32 v1, 4, v0")
        g("s_waitcnt lgkmcnt(0)")
        mk_srd(g, SRD_A, 'w_sp', 0, S_ * S_ * 2)
        mk_srd(g, SRD_B, 'w_out', 0, FH * D_ * 2)
        g("buffer_load_dwordx4 v[68:71], v1, s[%d:%d], s%d offen" % (SRD_B, SRD_B + 3, S_SOB))
        for k in range(4):
            g("buffer_load_dwordx4 v[%d:%d], v1, s[%d:%d], s%d offen" % (4 + 4 * k, 7 + 4 * k, SRD_A, SRD_A + 3, S_SOA))
            g("s_add_u32 s%d, s%d, 8192" % (S_SOA, S_SOA))
        g("s_endpgm")
    c.nvgpr = g.nvmax
    return g


def stats_issue(g, c, ctx, alias):
    v1 = alias
    vS = [v1, v1 + 28]
    ctx['vS'] = vS
    t = g.valloc(1)
    ctx['vSoff'] = t
    g("v_lshlrev_b32 v%d, 4, v0" % t)
    for r in range(2):
        for j in range(7):
            off = (j * 2048 + r * 1024) * 8
            g("s_mov_b32 s%d, %d" % (S_T0, off))
            g.vmem("buffer_load_dwordx4 %s, v%d, s[%d:%d], s%d offen" % (vr(vS[r] + j * 4, 4), t, SRD_E, SRD_E + 3, S_T0), ("S", 0))


def stats_finish(g, c, ctx, LDS_T0):
    vS = ctx['vS']
    t = ctx['vSoff']
    nv0 = g.nv
    H = [(r, h) for r in range(2) for h in range(2)]
    a = {k: g.valloc(1) for k in H}; b = {k: g.valloc(1) for k in H}
    dsb = g.valloc(8, 2)
    d = {k: dsb + n for n, k in enumerate(H)}; s = {k: dsb + 4 + n for n, k in enumerate(H)}
    o = [dsb, dsb + 4]
    c128 = g.valloc(1)
    g("v_mov_b32 v%d, 0x%x" % (c128, f2u(128.0)))
    g("v_add_u32 v%d, %d, v%d" % (t, LDS_T0, t))
    g.wait_vm(("S", 0))
    def M(j, k): return vS[k[0]] + 4 * j + 2 * k[1]
    def Q(j, k): return vS[k[0]] + 4 * j + 2 * k[1] + 1
    for k in H:
        g("v_add_f32 v%d, v%d, v%d" % (a[k], M(0, k), M(1, k)))
        g("v_add_f32 v%d, v%d, v%d" % (b[k], Q(0, k), Q(1, k)))
    for j in range(2, 7):
        for k in H:
            g("v_add_f32 v%d, v%d, v%d" % (a[k], a[k], M(j, k)))
            g("v_add_f32 v%d, v%d, v%d" % (b[k], b[k], Q(j, k)))
    for k in H:
        g("v_mul_f32 v%d, 0x%x, v%d" % (a[k], f2u(1.0 / 7.0), a[k]))
        g("v_mov_b32 v%d, 0" % s[k])
    for j in range(7):
        for k in H:
            g("v_sub_f32 v%d, v%d, v%d" % (d[k], M(j, k), a[k]))
        for k in H:
            g("v_fmac_f32 v%d, v%d, v%d" % (s[k], d[k], d[k]))
    for k in H:
        g("v_fmac_f32 v%d, v%d, v%d" % (b[k], s[k], c128))
    for k in H:
        g("v_mul_f32 v%d, 0x%x, v%d" % (b[k], f2u(1.0 / 896.0), b[k]))
    for k in H:
        g("v_cvt_pk_bf16_f32 v%d, v%d, v%d" % (d[k], a[k], b[k]))
    for k in H:
        g("v_lshlrev_b32 v%d, 16, v%d" % (a[k], d[k]))
        g("v_and_b32 v%d, 0xffff0000, v%d" % (b[k], d[k]))
    for k in H:
        g("v_add_f32 v%d, 0x%x, v%d" % (b[k], f2u(1e-5), b[k]))
    for k in H:
        g("v_cvt_pk_bf16_f32 v%d, v%d, v%d" % (b[k], b[k], b[k]))
    for k in H:
        g("v_lshlrev_b32 v%d, 16, v%d" % (b[k], b[k]))
    for k in H:
        g("v_sqrt_f32 v%d, v%d" % (b[k], b[k]))
    for k in H:
        g("v_cvt_pk_bf16_f32 v%d, v%d, v%d" % (b[k], b[k], b[k]))
    for k in H:
        g("v_lshlrev_b32 v%d, 16, v%d" % (b[k], b[k]))
    for k in H:
        g("v_rcp_f32 v%d, v%d" % (o[k[0]] + 2 * k[1], b[k]))
    for k in H:
        g("v_mul_f32 v%d, v%d, v%d" % (o[k[0]] + 2 * k[1] + 1, a[k], o[k[0]] + 2 * k[1]))
    for k in H:
        g("v_sub_f32 v%d, 0, v%d" % (o[k[0]] + 2 * k[1] + 1, o[k[0]] + 2 * k[1] + 1))
    for r in range(2):
        g("ds_write_b128 v%d, %s offset:%d" % (t, vr(o[r], 4), r * 1024 * 8))
    g("s_waitcnt lgkmcnt(0)")
    g("s_barrier")
    g.nv = nv0


def unpack8(g, dst, src):
    for d in range(4):
        g("v_lshlrev_b32 v%d, 16, v%d" % (dst + 2 * d, src + d))
        g("v_and_b32 v%d, 0xffff0000, v%d" % (dst + 2 * d + 1, src + d))


def pack8(g, dst, src):
    for d in range(4):
        g("v_cvt_pk_bf16_f32 v%d, v%d, v%d" % (dst + d, src + 2 * d, src + 2 * d + 1))


def store_pass(g, c, E, P, p, RPP):
    g("s_mov_b32 s%d, %d" % (S_T0, p * RPP * c.ldc))
    g.vmem("buffer_store_dwordx4 %s, v%d, s[%d:%d], s%d offen %s" % (vr(P, 4), E['co'], SRD_C, SRD_C + 3, S_T0, os.environ.get('STF', 'sc1')), ("ST", 0))


def regs_none(g, c, E, NPASS):
    pass


def pre_none(g, c, E, NPASS, RPP, T):
    pass


def dpp_sum16(g, dst, tmp):
    for pat in ("quad_perm:[1,0,3,2]", "quad_perm:[2,3,0,1]", "row_half_mirror", "row_mirror"):
        g("s_nop 1")
        g("v_add_f32_dpp v%d, v%d, v%d %s row_mask:0xf bank_mask:0xf" % (dst, dst, dst, pat))


def regs_k1(g, c, E, NPASS):
    E['sa'] = g.valloc(1)


def pre_k1(g, c, E, NPASS, RPP, T):
    t0, t1, t2, t3 = T
    g("s_sub_u32 s%d, s%d, 7" % (S_T0, S_TN))
    g("s_lshl_b32 s%d, s%d, 11" % (S_T0, S_T0))
    g("v_add_u32 v%d, s%d, v%d" % (t2, S_T0, t1))
    g("v_lshlrev_b32 v%d, 3, v%d" % (E['sa'], t2))


def epi_k1(g, c, E, X, NPASS, RPP):
    K1c = g.valloc(2, 2); K2c = g.valloc(2, 2)
    k1 = -2.0 * 0.7978845608028654 * 1.4426950408889634
    k2 = k1 * 0.044715
    for h in range(2):
        g("v_mov_b32 v%d, 0x%x" % (K1c + h, f2u(k1)))
        g("v_mov_b32 v%d, 0x%x" % (K2c + h, f2u(k2)))
    T = [g.valloc(8, 2) for _ in range(2)]
    P = [g.valloc(4, 4) for _ in range(NPASS)]
    g("s_waitcnt lgkmcnt(0)")
    for p0 in range(0, NPASS, 2):
        ps = [p0, p0 + 1]
        for p in ps:
            pack8(g, P[p], X[p])
        for p in ps:
            unpack8(g, X[p], P[p])
        for p in ps:
            for d in range(4):
                g("v_pk_mul_f32 %s, %s, %s" % (vr(T[p & 1] + 2 * d, 2), vr(X[p] + 2 * d, 2), vr(X[p] + 2 * d, 2)))
        for p in ps:
            for d in range(4):
                g("v_pk_fma_f32 %s, %s, %s, %s" % (vr(T[p & 1] + 2 * d, 2), vr(T[p & 1] + 2 * d, 2), vr(K2c, 2), vr(K1c, 2)))
        for p in ps:
            for d in range(4):
                g("v_pk_mul_f32 %s, %s, %s" % (vr(T[p & 1] + 2 * d, 2), vr(T[p & 1] + 2 * d, 2), vr(X[p] + 2 * d, 2)))
        for p in ps:
            for r in range(8):
                g("v_exp_f32 v%d, v%d" % (T[p & 1] + r, T[p & 1] + r))
        for p in ps:
            for r in range(8):
                g("v_add_f32 v%d, 1.0, v%d" % (T[p & 1] + r, T[p & 1] + r))
        for p in ps:
            for r in range(8):
                g("v_rcp_f32 v%d, v%d" % (T[p & 1] + r, T[p & 1] + r))
        for p in ps:
            for d in range(4):
                g("v_pk_mul_f32 %s, %s, %s" % (vr(T[p & 1] + 2 * d, 2), vr(T[p & 1] + 2 * d, 2), vr(X[p] + 2 * d, 2)))
        for p in ps:
            pack8(g, P[p], T[p & 1])
        for p in ps:
            store_pass(g, c, E, P[p], p, RPP)
    g("s_cmp_lt_u32 s%d, 7" % S_TN)
    g("s_cbranch_scc1 %s_nostats" % c.name)
    for p in range(NPASS):
        unpack8(g, X[p], P[p])
    S = [g.valloc(2, 2) for _ in range(NPASS)]
    MN = [g.valloc(2, 2) for _ in range(NPASS)]
    O = [g.valloc(2, 2) for _ in range(NPASS)]
    for p in range(NPASS):
        g("v_pk_add_f32 %s, %s, %s" % (vr(S[p], 2), vr(X[p], 2), vr(X[p] + 2, 2)))
    for d in range(2, 4):
        for p in range(NPASS):
            g("v_pk_add_f32 %s, %s, %s" % (vr(S[p], 2), vr(S[p], 2), vr(X[p] + 2 * d, 2)))
    for p in range(NPASS):
        g("v_add_f32 v%d, v%d, v%d" % (O[p], S[p], S[p] + 1))
    for pat in ("quad_perm:[1,0,3,2]", "quad_perm:[2,3,0,1]", "row_half_mirror", "row_mirror"):
        g("s_nop 1")
        for p in range(NPASS):
            g("v_add_f32_dpp v%d, v%d, v%d %s row_mask:0xf bank_mask:0xf" % (O[p], O[p], O[p], pat))
    for p in range(NPASS):
        g("v_mul_f32 v%d, 0x%x, v%d" % (O[p], f2u(1.0 / 128.0), O[p]))
    for p in range(NPASS):
        g("v_sub_f32 v%d, 0, v%d" % (MN[p], O[p]))
        g("v_sub_f32 v%d, 0, v%d" % (MN[p] + 1, O[p]))
    for d in range(4):
        for p in range(NPASS):
            g("v_pk_add_f32 %s, %s, %s" % (vr(X[p] + 2 * d, 2), vr(X[p] + 2 * d, 2), vr(MN[p], 2)))
    for p in range(NPASS):
        g("v_pk_mul_f32 %s, %s, %s" % (vr(S[p], 2), vr(X[p], 2), vr(X[p], 2)))
    for d in range(1, 4):
        for p in range(NPASS):
            g("v_pk_fma_f32 %s, %s, %s, %s" % (vr(S[p], 2), vr(X[p] + 2 * d, 2), vr(X[p] + 2 * d, 2), vr(S[p], 2)))
    for p in range(NPASS):
        g("v_add_f32 v%d, v%d, v%d" % (O[p] + 1, S[p], S[p] + 1))
    for pat in ("quad_perm:[1,0,3,2]", "quad_perm:[2,3,0,1]", "row_half_mirror", "row_mirror"):
        g("s_nop 1")
        for p in range(NPASS):
            g("v_add_f32_dpp v%d, v%d, v%d %s row_mask:0xf bank_mask:0xf" % (O[p] + 1, O[p] + 1, O[p] + 1, pat))
    t = g.valloc(1)
    g("v_and_b32 v%d, 15, v0" % t)
    g("v_cmp_eq_u32 vcc, 0, v%d" % t)
    g("s_and_saveexec_b64 s[60:61], vcc")
    for p in range(NPASS):
        g.vmem("buffer_store_dwordx2 %s, v%d, s[%d:%d], 0 offen offset:%d" % (vr(O[p], 2), E['sa'], SRD_E, SRD_E + 3, p * RPP * 8), ("ST", 0))
    g("s_mov_b64 exec, s[60:61]")
    g.lab("%s_nostats" % c.name)


def regs_k2(g, c, E, NPASS):
    E['z'] = [g.valloc(4, 2) for _ in range(NPASS)]
    E['b'] = [g.valloc(1) for _ in range(NPASS)]


def pre_k2(g, c, E, NPASS, RPP, T):
    t0, t1, t2, t3 = T
    g("s_mov_b32 s%d, %d" % (S_T1, F_ * 2))
    g("v_mul_lo_u32 v%d, v%d, s%d" % (t2, t1, S_T1))
    g("v_lshl_add_u32 v%d, v%d, 4, v%d" % (t2, t0, t2))
    g("s_mul_i32 s%d, s%d, %d" % (S_T0, S_TN, c.BN * 2))
    g("v_add_u32 v%d, s%d, v%d" % (t2, S_T0, t2))
    for p in range(NPASS):
        g("s_mov_b32 s%d, %d" % (S_T0, p * RPP * F_ * 2))
        g.vmem("buffer_load_dwordx4 %s, v%d, s[%d:%d], s%d offen" % (vr(E['z'][p], 4), t2, SRD_D, SRD_D + 3, S_T0), ("Z", 0))
    mk_srd(g, SRD_F, 'b_sp', 0, S_ * 2)
    g("v_lshlrev_b32 v%d, 1, v%d" % (t3, t1))
    for p in range(NPASS):
        g.vmem("buffer_load_ushort v%d, v%d, s[%d:%d], 0 offen offset:%d" % (E['b'][p], t3, SRD_F, SRD_F + 3, p * RPP * 2), ("Z", 0))


def epi_k2(g, c, E, X, NPASS, RPP):
    Y = [g.valloc(8, 2) for _ in range(NPASS)]
    B2 = [g.valloc(2, 2) for _ in range(NPASS)]
    P = [g.valloc(4, 4) for _ in range(NPASS)]
    PS = range(NPASS)
    for p in PS:
        g("v_lshlrev_b32 v%d, 16, v%d" % (B2[p], E['b'][p]))
        g("v_lshlrev_b32 v%d, 16, v%d" % (B2[p] + 1, E['b'][p]))
        unpack8(g, Y[p], E['z'][p])
    g("s_waitcnt lgkmcnt(0)")
    for p in PS:
        pack8(g, P[p], X[p])
    for p in PS:
        unpack8(g, X[p], P[p])
    for p in PS:
        for d in range(4):
            g("v_pk_add_f32 %s, %s, %s" % (vr(X[p] + 2 * d, 2), vr(X[p] + 2 * d, 2), vr(B2[p], 2)))
    for p in PS:
        pack8(g, P[p], X[p])
    for p in PS:
        unpack8(g, X[p], P[p])
    for p in PS:
        for d in range(4):
            g("v_pk_mul_f32 %s, %s, %s" % (vr(X[p] + 2 * d, 2), vr(X[p] + 2 * d, 2), vr(Y[p] + 2 * d, 2)))
    for p in PS:
        pack8(g, P[p], X[p])
    for p in PS:
        store_pass(g, c, E, P[p], p, RPP)


def epi_k3(g, c, E, X, NPASS, RPP):
    P = [g.valloc(4, 4) for _ in range(NPASS)]
    g("s_waitcnt lgkmcnt(0)")
    for p in range(NPASS):
        pack8(g, P[p], X[p])
    for p in range(NPASS):
        store_pass(g, c, E, P[p], p, RPP)


def main():
    k1 = Cfg()
    k1.name = "gemm1_kernel"; k1.K = D_; k1.BM = 128; k1.BN = 128; k1.BK = 64; k1.WM = 64; k1.WN = 64
    k1.mode = 'dma'; k1.slots = 5; k1.PD = 2; k1.lda = D_ * 2; k1.ldb = F_ * 2; k1.ldc = F_ * 2; k1.TM = 16; k1.TN = 14; k1.ln = False
    k1.a_buf = ('x', 0, S_ * D_ * 2); k1.b_buf = ('w_in', 0, D_ * F_ * 2); k1.c_buf = ('ws', WS_Z, S_ * F_ * 2)
    k1.e_buf = ('ws', WS_ST, 7 * 2048 * 8)
    k1.prefetch = not os.environ.get('NOPF'); k1.epi_regs = regs_k1; k1.epi_pre = pre_k1; k1.epi = epi_k1

    k2 = Cfg()
    k2.name = "gemm2_kernel"; k2.K = S_; k2.BM = 128; k2.BN = 64; k2.BK = 64; k2.WM = 32; k2.WN = 64
    k2.amode = os.environ.get('AMODE', 'dma'); k2.slots = int(os.environ.get('RSA', 7)); k2.nload = int(os.environ.get('NL', 2)); k2.DA = int(os.environ.get('DA', 6)); k2.DB = int(os.environ.get('DB', 6)); k2.PD = 3; k2.lda = S_ * 2; k2.ldb = F_ * 2; k2.ldc = FH * 2; k2.TM = 16; k2.TN = 14; k2.ln = True
    k2.b_col0 = FH
    k2.a_buf = ('w_sp', 0, S_ * S_ * 2); k2.b_buf = ('ws', WS_Z, S_ * F_ * 2); k2.c_buf = ('ws', WS_H, S_ * FH * 2)
    k2.d_buf = ('ws', WS_Z, S_ * F_ * 2); k2.e_buf = ('ws', WS_ST, 7 * 2048 * 8)
    k2.epi_regs = regs_k2; k2.epi_pre = pre_k2; k2.epi = epi_k2

    k3 = Cfg()
    k3.name = "gemm3_kernel"; k3.K = FH; k3.BM = 64; k3.BN = 64; k3.BK = 128; k3.WM = 32; k3.WN = 32
    k3.mode = 'dma'; k3.slots = 5; k3.PD = 5; k3.lda = FH * 2; k3.ldb = D_ * 2; k3.ldc = D_ * 2; k3.TM = 32; k3.TN = 7; k3.ln = False
    k3.a_buf = ('ws', WS_H, S_ * FH * 2); k3.b_buf = ('w_out', 0, FH * D_ * 2); k3.c_buf = ('out', 0, S_ * D_ * 2)
    k3.epi_regs = regs_none; k3.epi_pre = pre_none; k3.epi = epi_k3

    ks = [k1, k2, k3]
    for i, k in enumerate(ks):
        k.kid = i
    gs = [gen_kernel(k) for k in ks]
    out = []
    hdr = open("standalone__mixer_gmlp__prompt.s.ref").read().splitlines()
    for ln in hdr:
        if ln.startswith(";") and "@launch" not in ln:
            out.append(ln)
    for k in ks:
        out.append("; @launch kernel=%s grid=(%d,1,1) block=(%d,1,1) lds=%d" % (k.name, k.TM * k.TN + (32 if getattr(k, 'prefetch', False) else 0), 512 + 64 * (k.nload if k.ln else 0), k.lds))
    out.append('.amdgcn_target "amdgcn-amd-amdhsa--gfx950"')
    out.append(".text")
    for k, g in zip(ks, gs):
        out.append(".globl %s" % k.name)
        out.append(".p2align 8")
        out.append(".type %s,@function" % k.name)
        out += g.L
    out.append('.section .rodata,"a"')
    for k in ks:
        nv = max(k.nvgpr, 8)
        assert nv <= 256, (k.name, nv)
        ao = (nv + 3) // 4 * 4
        out.append(".p2align 6")
        out.append(".amdhsa_kernel %s" % k.name)
        out.append("  .amdhsa_next_free_vgpr %d" % nv)
        out.append("  .amdhsa_next_free_sgpr 96")
        out.append("  .amdhsa_accum_offset %d" % ao)
        out.append("  .amdhsa_group_segment_fixed_size 0")
        out.append("  .amdhsa_kernarg_size 64")
        out.append("  .amdhsa_user_sgpr_count 2")
        out.append("  .amdhsa_user_sgpr_kernarg_segment_ptr 1")
        out.append("  .amdhsa_system_sgpr_workgroup_id_x 1")
        out.append("  .amdhsa_float_denorm_mode_32 3")
        out.append(".end_amdhsa_kernel")
        sys.stderr.write("%s: vgpr=%d lds=%d\n" % (k.name, k.nvgpr, k.lds))
    open(sys.argv[1] if len(sys.argv) > 1 else "standalone__mixer_gmlp__prompt.s", "w").write("\n".join(out) + "\n")


main()
```
